```python
import torch

def _softmax(x, axis=-1):
    return torch.softmax(x, dim=axis)
def _gelu(x):
    return torch.nn.functional.gelu(x, approximate="tanh")
def _silu(x):
    return torch.nn.functional.silu(x)
def _sigmoid(x):
    return torch.sigmoid(x)
def _layernorm(x, axis=-1, eps=1e-5):
    m = x.mean(dim=axis, keepdim=True)
    v = x.var(dim=axis, keepdim=True, unbiased=False)
    return (x - m) / torch.sqrt(v + eps)
def _scatter_add(tgt, idx, src, axis=0):
    return tgt.clone().index_add_(axis, idx, src)
def _segment_sum(src, seg, n):
    out = torch.zeros((n,) + src.shape[1:], dtype=src.dtype)
    return out.index_add_(0, seg, src)
def _pad(x, pw):
    flat = tuple(v for pair in reversed(pw) for v in pair)
    return torch.nn.functional.pad(x, flat)

kernel_name = 'sequential_preLN__spectral_fnet__dense_activation_relu__prompt'

def setup_inputs():

    _w = (lambda a: (lambda t: t.to(torch.bfloat16) if t.is_floating_point() else t)(torch.as_tensor(a)))
    def _A_setup():
        B, S, D = 1, 2048, 512
        ns = torch.arange(S)[:, None] * torch.arange(S)[None, :]
        nd = torch.arange(D)[:, None] * torch.arange(D)[None, :]
        Ws_re = torch.cos(-2.0 * torch.pi * ns / S).to(float)
        Ws_im = torch.sin(-2.0 * torch.pi * ns / S).to(float)
        Wd_re = torch.cos(-2.0 * torch.pi * nd / D).to(float)
        Wd_im = torch.sin(-2.0 * torch.pi * nd / D).to(float)
        return {
            "x": _w((lambda *s: torch.randn(*s, dtype=torch.bfloat16) * 0.05)(B, S, D)),
            "dft_seq_re": _w(Ws_re),
            "dft_seq_im": _w(Ws_im),
            "dft_hid_re": _w(Wd_re),
            "dft_hid_im": _w(Wd_im),
        }
    _A_in = _A_setup()

    def _B_setup():
        B, S, D, Dff = 1, 2048, 512, 1792
        return {
            "x": _w((lambda *s: torch.randn(*s, dtype=torch.bfloat16) * 0.05)(B, S, D)),
            "w1": _w((lambda *s: torch.randn(*s, dtype=torch.bfloat16) * 0.4)(D, Dff)),
            "w2": _w((lambda *s: torch.randn(*s, dtype=torch.bfloat16) * 0.4)(Dff, D)),
        }
    _B_in = _B_setup()

    return {
        "A_x": _A_in["x"],
        "A_dft_seq_re": _A_in["dft_seq_re"],
        "A_dft_seq_im": _A_in["dft_seq_im"],
        "A_dft_hid_re": _A_in["dft_hid_re"],
        "A_dft_hid_im": _A_in["dft_hid_im"],
        "B_x": _B_in["x"],
        "B_w1": _B_in["w1"],
        "B_w2": _B_in["w2"],
    }

def reference(A_x, A_dft_seq_re, A_dft_seq_im, A_dft_hid_re, A_dft_hid_im, B_x, B_w1, B_w2):
    def _A_ref(x, dft_seq_re, dft_seq_im, dft_hid_re, dft_hid_im):
        a = torch.einsum("bsd,ed->bse", x, dft_hid_re)
        b = torch.einsum("bsd,ed->bse", x, dft_hid_im)
        y = torch.einsum("ts,bse->bte", dft_seq_re, a) - torch.einsum("ts,bse->bte", dft_seq_im, b)
        return y

    def _B_ref(x, w1, w2):
        h = torch.einsum("bsd,df->bsf", x, w1)
        zero = torch.zeros_like(h)
        h = torch.maximum(h, zero)
        return torch.einsum("bsf,fd->bsd", h, w2)

    x = A_x
    h = x + _A_ref(_layernorm(x, axis=-1), A_dft_seq_re, A_dft_seq_im, A_dft_hid_re, A_dft_hid_im)
    h2 = h + _B_ref(_layernorm(h, axis=-1), B_w1, B_w2)
    return h2
```

```python
import re

TRANS = ("v_exp_f32", "v_log_f32", "v_rcp_f32", "v_rsq_f32", "v_sqrt_f32", "v_sin_f32", "v_cos_f32")


def regs_of(tok):
    tok = tok.strip()
    tok = tok.lstrip("-")
    if tok.startswith("abs(") or tok.startswith("|"):
        tok = tok.replace("abs(", "").replace(")", "").replace("|", "")
    m = re.fullmatch(r"([vas])(\d+)", tok)
    if m:
        return {(m.group(1), int(m.group(2)))}
    m = re.fullmatch(r"([vas])\[(\d+):(\d+)\]", tok)
    if m:
        return {(m.group(1), i) for i in range(int(m.group(2)), int(m.group(3)) + 1)}
    if tok in ("vcc", "vcc_lo", "vcc_hi"):
        return {("vcc", 0)}
    if tok == "m0":
        return {("m0", 0)}
    if tok in ("exec", "exec_lo", "exec_hi"):
        return {("exec", 0)}
    return set()


class Ins:
    def __init__(self, text):
        self.text = text
        t = text.split(";")[0].strip()
        self.label = t.endswith(":")
        parts = t.split(None, 1)
        self.op = parts[0] if parts else ""
        rest = parts[1] if len(parts) > 1 else ""
        ops, cur, depth = [], "", 0
        for ch in rest:
            if ch in "[(":
                depth += 1
            if ch in "])":
                depth -= 1
            if ch == "," and depth == 0:
                ops.append(cur.strip())
                cur = ""
            else:
                cur += ch
        if cur.strip():
            ops.append(cur.strip())
        self.mods = ""
        if ops:
            sp = ops[-1].split(None, 1)
            if len(sp) > 1:
                ops[-1] = sp[0]
                self.mods = sp[1]
        self.ops = ops
        op = self.op
        self.is_mfma = op.startswith("v_mfma")
        self.is_valu = op.startswith("v_") and not self.is_mfma
        self.is_trans = any(op.startswith(x) for x in TRANS)
        self.is_dot = op.startswith("v_dot")
        self.is_dpp = "dpp" in op or "quad_perm" in self.mods or "row_" in self.mods
        self.is_perml = op.startswith("v_permlane")
        self.is_rdlane = op.startswith("v_readlane") or op.startswith("v_readfirstlane")
        self.is_vmem = op.startswith("buffer_") or op.startswith("global_")
        self.is_ds = op.startswith("ds_")
        self.is_salu = op.startswith("s_") and not self.label
        self.is_lds_dma = self.is_vmem and (" lds" in (" " + self.mods) or "load_lds" in op)
        self.is_branch = op.startswith("s_cbranch") or op == "s_branch" or op == "s_endpgm"
        R = [regs_of(o) for o in ops]
        self.dst, self.src = set(), set()
        self.srcC = set()
        self.srcAB = set()
        self.store_data = set()
        if self.label or not op:
            return
        if self.is_mfma:
            self.dst = R[0]
            self.srcAB = R[1] | R[2]
            self.srcC = R[3] if len(R) > 3 else set()
            self.src = self.srcAB | self.srcC
        elif self.is_perml:
            self.dst = R[0] | R[1]
            self.src = R[0] | R[1]
        elif self.is_valu:
            self.dst = set(R[0])
            k = 1
            if op.startswith(("v_add_co", "v_addc_co", "v_sub_co", "v_subb_co", "v_div_scale")):
                self.dst |= R[1]
                k = 2
            for r in R[k:]:
                self.src |= r
            if op.startswith(("v_fmac", "v_dot2c", "v_pk_fmac")):
                self.src |= R[0]
            if op.startswith("v_cndmask") and len(R) == 3:
                self.src |= {("vcc", 0)}
            if op.startswith("v_dot2c"):
                self.srcC = set(R[0])
            elif self.is_dot and len(R) > 3:
                self.srcC = set(R[3])
        elif self.is_vmem:
            if "store" in op or "atomic" in op:
                for r in R:
                    self.src |= r
                self.store_data = R[0] if op.startswith("buffer_") else R[1]
            elif self.is_lds_dma:
                for r in R:
                    self.src |= r
                self.src |= {("m0", 0)}
            else:
                self.dst = set(R[0])
                for r in R[1:]:
                    self.src |= r
        elif self.is_ds:
            if op.startswith("ds_write"):
                for r in R:
                    self.src |= r
            else:
                self.dst = set(R[0])
                for r in R[1:]:
                    self.src |= r
        elif self.is_salu:
            if op.startswith(("s_cmp", "s_waitcnt", "s_nop", "s_barrier", "s_cbranch", "s_branch", "s_endpgm", "s_setprio", "s_sleep")):
                for r in R:
                    self.src |= r
            else:
                if R:
                    self.dst = set(R[0])
                for r in R[1:]:
                    self.src |= r
                if "saveexec" in op:
                    self.dst |= {("exec", 0)}

    def states(self):
        if self.label or not self.op:
            return 0
        if self.op == "s_nop":
            return int(self.ops[0], 0) + 1
        return 1


def mfma_passes(op):
    if "16x16x32" in op or "16x16x16" in op:
        return 4
    if "32x32x16" in op or "32x32x8" in op:
        return 8
    raise ValueError(op)


def required(p, c):
    need = 0
    vd = {r for r in p.dst if r[0] in "va"}
    sd = {r for r in p.dst if r[0] in ("s", "vcc")}
    if p.is_valu:
        if c.is_mfma and (vd & c.src):
            need = max(need, 2)
        if p.is_trans and c.is_valu and not c.is_trans and (vd & c.src):
            need = max(need, 1)
        if p.is_trans and c.is_mfma and (vd & c.src):
            need = max(need, 2)
        if c.is_dpp and (vd & c.src):
            need = max(need, 2)
        if c.is_perml and (vd & c.src):
            need = max(need, 2)
        if c.is_rdlane and (vd & c.src):
            need = max(need, 1)
        if sd:
            if c.is_valu and (sd & c.src):
                need = max(need, 4 if c.is_rdlane else 2)
            if c.is_vmem and (sd & c.src):
                need = max(need, 5)
            if c.is_salu and (sd & c.src):
                need = max(need, 1)
        if p.is_dot:
            if c.is_dot and c.op == p.op:
                if vd & (c.src - c.srcC):
                    need = max(need, 3)
            elif (vd & (c.src | c.dst)):
                need = max(need, 3)
        if ("exec", 0) in p.dst:
            need = max(need, 5)
    if p.is_mfma:
        ps = mfma_passes(p.op)
        big = {4: 8, 8: 12}[ps]
        if c.is_mfma:
            if vd & c.srcAB:
                need = max(need, big)
            if vd & c.srcC:
                if c.srcC == p.dst and mfma_passes(c.op) == ps:
                    pass
                else:
                    need = max(need, {4: 6, 8: 10}[ps])
            elif vd & c.dst:
                need = max(need, big)
        else:
            if vd & (c.src | c.dst):
                need = max(need, big)
        if c.is_valu and (p.srcC & c.dst):
            need = max(need, {4: 3, 8: 7}[ps])
    if p.is_salu and ("m0", 0) in p.dst and c.is_lds_dma:
        need = max(need, 1)
    if p.store_data and len(p.store_data) >= 3 and (p.store_data & c.dst):
        need = max(need, 2)
    return need


class Asm:
    def __init__(self):
        self.lines = []

    def __call__(self, text):
        for t in text.strip().split("\n"):
            t = t.strip()
            if t:
                self.lines.append(t)

    def finalize(self):
        out = []
        hist = []
        for t in self.lines:
            if t.startswith(";") or t.startswith("."):
                out.append(t)
                continue
            ins = Ins(t)
            if ins.label:
                out.append(t)
                hist = []
                continue
            need = 0
            dist = 0
            for p in reversed(hist):
                r = required(p, ins)
                if r - dist > need:
                    need = r - dist
                dist += p.states()
                if dist > 24:
                    break
            while need > 0:
                n = min(need, 16)
                nop = Ins(f"s_nop {n-1}")
                out.append("    " + nop.text)
                hist.append(nop)
                need -= n
            out.append("    " + t)
            hist.append(ins)
        return "\n".join(out) + "\n"
```

```python
import sys
from asmlib import Asm

WS_G = 0x000000
WS_GC = 0x200000
WS_CS = 0x210000
WS_H = 0x400000
WS_H1 = 0x800000
WS_SIZE = 0x1000000

HEADER = """; FNet block: out = h + FFN(LN(h)),  h = x + Re(DFT_seq(DFT_hid(LN(x))))
"""


def srd(a, d, lo, hi, size):
    a(f"s_mov_b32 s{d}, s{lo}")
    a(f"s_and_b32 s{d+1}, s{hi}, 0xffff")
    a(f"s_mov_b32 s{d+2}, {size}")
    a(f"s_mov_b32 s{d+3}, 0x00020000")


def srd_off(a, d, lo, hi, off, size):
    a(f"s_add_u32 s{d}, s{lo}, {off}")
    a(f"s_addc_u32 s{d+1}, s{hi}, 0")
    a(f"s_and_b32 s{d+1}, s{d+1}, 0xffff")
    a(f"s_mov_b32 s{d+2}, {size}")
    a(f"s_mov_b32 s{d+3}, 0x00020000")


def vr(b, n=1):
    return f"v{b}" if n == 1 else f"v[{b}:{b+n-1}]"


def ar(b, n=1):
    return f"a{b}" if n == 1 else f"a[{b}:{b+n-1}]"


def k1(a):
    PITCH = 1056
    XOFF = 32 * PITCH
    a("k1_kernel:")
    a("s_cmp_ge_u32 s2, 288")
    a("s_cbranch_scc1 K1_END")
    a("s_load_dwordx2 s[4:5], s[0:1], 0")
    a("s_load_dwordx2 s[6:7], s[0:1], 24")
    a("s_load_dwordx2 s[8:9], s[0:1], 32")
    a("s_load_dwordx2 s[10:11], s[0:1], 80")
    a("s_load_dwordx2 s[34:35], s[0:1], 48")
    a("s_cmp_lt_u32 s2, 32")
    a("s_cbranch_scc1 K1_CS")
    a("s_sub_u32 s3, s2, 32")
    a("s_and_b32 s28, s3, 7")
    a("s_lshr_b32 s29, s3, 3")
    a("s_and_b32 s30, s29, 3")
    a("s_lshr_b32 s29, s29, 2")
    a("s_lshl_b32 s29, s29, 3")
    a("s_add_u32 s28, s28, s29")
    a("v_lshrrev_b32 v1, 6, v0")
    a("v_readfirstlane_b32 s31, v1")
    a("v_and_b32 v1, 63, v0")
    a("v_and_b32 v2, 15, v0")
    a("v_lshrrev_b32 v3, 4, v1")
    a("s_and_b32 s32, s31, 3")
    a("s_lshr_b32 s33, s31, 2")
    a("v_lshlrev_b32 v4, 16, v3")
    a("v_lshl_add_u32 v4, v2, 4, v4")
    a("s_lshl_b32 s36, s31, 18")
    a("s_lshl_b32 s37, s28, 10")
    a("s_add_u32 s36, s36, s37")
    a("s_lshl_b32 s38, s30, 6")
    a("s_lshl_b32 s39, s32, 4")
    a("s_add_u32 s38, s38, s39")
    a("v_add_u32 v5, s38, v2")
    a("v_cmp_eq_u32 vcc, 0, v5")
    a("v_lshlrev_b32 v5, 10, v5")
    a("v_lshl_add_u32 v5, v3, 4, v5")
    a("v_add_u32 v6, 0x40000, v5")
    a("v_cndmask_b32 v6, v5, v6, vcc")
    a("s_lshl_b32 s37, s33, 9")
    a("s_waitcnt lgkmcnt(0)")
    srd(a, 12, 4, 5, 2097152)
    srd(a, 16, 6, 7, 524288)
    srd(a, 20, 8, 9, 524288)
    srd(a, 24, 10, 11, WS_SIZE)
    XD = 16
    WC = 32
    WSN = 64
    TR, TI = 96, 100
    ACC = 104
    for i in range(4):
        a(f"buffer_load_dwordx4 {vr(XD+4*i,4)}, v4, s[12:15], s36 offen offset:{256*i}")
    for s in range(8):
        a(f"buffer_load_dwordx4 {vr(WC+4*s,4)}, v6, s[16:19], s37 offen offset:{64*s}")
        a(f"buffer_load_dwordx4 {vr(WSN+4*s,4)}, v5, s[20:23], s37 offen offset:{64*s}")
    a("s_lshl_b32 s39, s33, 4")
    a("v_add_u32 v7, s39, v2")
    a("v_lshl_add_u32 v8, v3, 9, s28")
    a("v_mul_u32_u24 v9, v7, v8")
    a("v_lshlrev_b32 v10, 6, v7")
    a("s_mov_b32 s40, 0x3a000000")
    for jj in range(4):
        for h in range(2):
            a("v_and_b32 v11, 0x7ff, v9")
            a("v_cvt_f32_u32 v11, v11")
            a("v_mul_f32 v11, s40, v11")
            a(f"v_cos_f32 v{12+h}, v11")
            a(f"v_sin_f32 v{14+h}, v11")
            a("v_add_u32 v9, v9, v10")
        a(f"v_cvt_pk_bf16_f32 v{TR+jj}, v12, v13")
        a(f"v_cvt_pk_bf16_f32 v{TI+jj}, -v14, -v15")
    a("s_and_b32 s39, s31, 1")
    a("s_lshl_b32 s39, s39, 4")
    a("s_lshr_b32 s41, s31, 1")
    a("s_lshl_b32 s41, s41, 2")
    a("s_add_u32 s39, s39, s41")
    a("v_add_u32 v8, s39, v3")
    a(f"v_mul_u32_u24 v8, {PITCH}, v8")
    a("v_lshl_add_u32 v8, v2, 4, v8")
    a(f"v_mul_u32_u24 v9, {PITCH}, v2")
    a("v_lshl_add_u32 v9, v3, 4, v9")
    a("v_add_u32 v9, s37, v9")
    for i in range(16):
        a(f"v_mov_b32 v{ACC+i}, 0")
    a("v_mov_b32 v10, 0x3f803f80")
    a("v_mov_b32 v12, 0")
    a("v_mov_b32 v13, 0")
    a("v_mov_b32 v14, 0")
    a("v_mov_b32 v15, 0")
    a("s_waitcnt vmcnt(16)")
    for i in range(16):
        a(f"v_dot2_f32_bf16 v{12+(i&1)}, v{XD+i}, v10, v{12+(i&1)}")
        a(f"v_dot2_f32_bf16 v{14+(i&1)}, v{XD+i}, v{XD+i}, v{14+(i&1)}")
    a("v_add_f32 v12, v12, v13")
    a("v_add_f32 v14, v14, v15")
    for mod in ("quad_perm:[1,0,3,2]", "quad_perm:[2,3,0,1]", "row_half_mirror", "row_mirror"):
        a(f"v_add_f32_dpp v12, v12, v12 {mod} row_mask:0xf bank_mask:0xf")
        a(f"v_add_f32_dpp v14, v14, v14 {mod} row_mask:0xf bank_mask:0xf")
    a("s_mov_b32 s40, 0x3b000000")
    a("s_mov_b32 s41, 0xffff0000")
    a("v_mul_f32 v12, s40, v12")
    a("v_mul_f32 v14, s40, v14")
    a("v_fma_f32 v14, -v12, v12, v14")
    a("v_max_f32 v14, 0, v14")
    a("v_cvt_pk_bf16_f32 v12, -v12, -v12")
    a("v_and_b32 v12, s41, v12")
    a("v_cvt_pk_bf16_f32 v14, v14, v14")
    a("v_and_b32 v14, s41, v14")
    a("v_add_f32 v14, 0x3727c5ac, v14")
    a("v_cvt_pk_bf16_f32 v14, v14, v14")
    a("v_and_b32 v14, s41, v14")
    a("v_sqrt_f32 v14, v14")
    a("v_cvt_pk_bf16_f32 v14, v14, v14")
    a("v_and_b32 v14, s41, v14")
    a("v_rcp_f32 v14, v14")
    T0 = 120
    for i in range(16):
        t = T0 + 2 * (i & 3)
        a(f"v_lshlrev_b32 v{t}, 16, v{XD+i}")
        a(f"v_and_b32 v{t+1}, s41, v{XD+i}")
        a(f"v_pk_add_f32 {vr(t,2)}, {vr(t,2)}, v[12:13] op_sel_hi:[1,0]")
        a(f"v_cvt_pk_bf16_f32 v{XD+i}, v{t}, v{t+1}")
        a(f"v_lshlrev_b32 v{t}, 16, v{XD+i}")
        a(f"v_and_b32 v{t+1}, s41, v{XD+i}")
        a(f"v_pk_mul_f32 {vr(t,2)}, {vr(t,2)}, v[14:15] op_sel_hi:[1,0]")
        a(f"v_cvt_pk_bf16_f32 v{XD+i}, v{t}, v{t+1}")
        if (i & 3) == 3:
            a(f"ds_write_b128 v8, {vr(XD+i-3,4)} offset:{256*(i>>2)}")
    a("s_cmp_lg_u32 s38, 0")
    a("s_cbranch_scc1 K1_NOFIX")
    a("v_cmp_eq_u32 vcc, 0, v2")
    a("v_mov_b32 v10, 0x3f803f80")
    a("s_waitcnt vmcnt(0)")
    for i in range(32):
        a(f"v_cndmask_b32 v{WSN+i}, v{WSN+i}, v10, vcc")
    a("K1_NOFIX:")
    a("s_waitcnt lgkmcnt(0)")
    a("s_barrier")
    AF = XD
    def rd(s):
        base = AF + 8 * (s & 1)
        a(f"ds_read_b128 {vr(base,4)}, v9 offset:{64*s}")
        a(f"ds_read_b128 {vr(base+4,4)}, v9 offset:{16*PITCH+64*s}")
    rd(0)
    for s in range(8):
        if s < 7:
            rd(s + 1)
            a(f"s_waitcnt vmcnt({14-2*s}) lgkmcnt(2)")
        else:
            a("s_waitcnt vmcnt(0) lgkmcnt(0)")
        base = AF + 8 * (s & 1)
        for b in range(2):
            a(f"v_mfma_f32_16x16x32_bf16 {vr(ACC+8*b,4)}, {vr(base+4*b,4)}, {vr(WC+4*s,4)}, {vr(ACC+8*b,4)}")
            a(f"v_mfma_f32_16x16x32_bf16 {vr(ACC+8*b+4,4)}, {vr(base+4*b,4)}, {vr(WSN+4*s,4)}, {vr(ACC+8*b+4,4)}")
    a("s_lshl_b32 s39, s31, 12")
    a(f"s_add_u32 s39, s39, {XOFF}")
    a("v_lshl_add_u32 v8, v1, 4, s39")
    a("v_xor_b32 v9, 0x4000, v8") if (XOFF & 0x4000) == 0 else None
    for i in range(4):
        a(f"ds_write_b128 v8, {vr(ACC+4*i,4)} offset:{1024*i}")
    a("s_waitcnt lgkmcnt(0)")
    a("s_barrier")
    for i in range(4):
        a(f"ds_read_b128 {vr(WC+4*i,4)}, v9 offset:{1024*i}")
    a("v_lshlrev_b32 v4, 16, v7")
    a("v_lshl_add_u32 v4, v3, 3, v4")
    a("s_lshl_b32 s39, s28, 10")
    a("s_lshl_b32 s40, s38, 1")
    a("s_add_u32 s39, s39, s40")
    a("v_add_u32 v5, s38, v3")
    a("v_cmp_eq_u32 vcc, 0, v5")
    a("v_cndmask_b32 v5, 1.0, 0, vcc")
    a("s_waitcnt lgkmcnt(0)")
    for i in range(16):
        a(f"v_add_f32 v{ACC+i}, v{ACC+i}, v{WC+i}")
    ZR, ZI = 48, 52
    for b in range(2):
        a(f"v_cvt_pk_bf16_f32 v{ZR+2*b}, v{ACC+8*b}, v{ACC+8*b+1}")
        a(f"v_cvt_pk_bf16_f32 v{ZR+2*b+1}, v{ACC+8*b+2}, v{ACC+8*b+3}")
        a(f"v_cvt_pk_bf16_f32 v{ZI+2*b}, v{ACC+8*b+4}, v{ACC+8*b+5}")
        a(f"v_cvt_pk_bf16_f32 v{ZI+2*b+1}, v{ACC+8*b+6}, v{ACC+8*b+7}")
    P1, P2, P3, P4 = 64, 68, 72, 76
    a(f"v_mfma_f32_16x16x32_bf16 {vr(P1,4)}, {vr(ZR,4)}, {vr(TR,4)}, 0")
    a(f"v_mfma_f32_16x16x32_bf16 {vr(P2,4)}, {vr(ZI,4)}, {vr(TI,4)}, 0")
    a(f"v_mfma_f32_16x16x32_bf16 {vr(P3,4)}, {vr(ZR,4)}, {vr(TI,4)}, 0")
    a(f"v_mfma_f32_16x16x32_bf16 {vr(P4,4)}, {vr(ZI,4)}, {vr(TR,4)}, 0")
    G = 80
    a(f"v_fma_f32 v{G}, -v5, v{P2}, v{P1}")
    for r in range(1, 4):
        a(f"v_sub_f32 v{G+r}, v{P1+r}, v{P2+r}")
    a(f"v_fma_f32 v{G+4}, v5, v{P4}, v{P3}")
    for r in range(1, 4):
        a(f"v_add_f32 v{G+4+r}, v{P3+r}, v{P4+r}")
    a(f"v_cvt_pk_bf16_f32 v88, v{G}, v{G+1}")
    a(f"v_cvt_pk_bf16_f32 v89, v{G+2}, v{G+3}")
    a(f"v_cvt_pk_bf16_f32 v90, v{G+4}, v{G+5}")
    a(f"v_cvt_pk_bf16_f32 v91, v{G+6}, v{G+7}")
    a("buffer_store_dwordx2 v[88:89], v4, s[24:27], s39 offen")
    a("buffer_store_dwordx2 v[90:91], v4, s[24:27], s39 offen offset:512")
    a("s_cmp_lg_u32 s38, 0")
    a("s_cbranch_scc1 K1_END")
    a(f"v_cvt_pk_bf16_f32 v92, v{P4}, v{P4}")
    a("v_mov_b32 v93, 0")
    a(f"v_cvt_pk_bf16_f32 v94, v{P2}, v{P2}")
    a("v_mov_b32 v95, 0")
    a("v_lshlrev_b32 v4, 10, v7")
    a("s_lshl_b32 s39, s28, 4")
    a(f"s_add_u32 s39, s39, {WS_GC}")
    a("v_cmp_gt_u32 vcc, 16, v1")
    a("s_and_saveexec_b64 s[42:43], vcc")
    a("buffer_store_dwordx4 v[92:95], v4, s[24:27], s39 offen")
    a("s_endpgm")
    a("K1_CS:")
    a("s_cmp_ge_u32 s2, 28")
    a("s_cbranch_scc1 K1_END")
    a("v_and_b32 v1, 7, v0")
    a("v_lshrrev_b32 v2, 3, v0")
    a("s_mov_b32 s40, 28672")
    a("v_mul_lo_u32 v3, v2, s40")
    a("v_lshl_add_u32 v3, v1, 4, v3")
    a("s_lshl_b32 s36, s2, 7")
    a("s_waitcnt lgkmcnt(0)")
    srd(a, 12, 34, 35, 1835008)
    srd(a, 24, 10, 11, WS_SIZE)
    for i in range(8):
        a(f"buffer_load_dwordx4 {vr(16+4*i,4)}, v3, s[12:15], s36 offen")
        if i < 7:
            a("s_add_u32 s36, s36, 3584")
    a("s_mov_b32 s41, 0xffff0000")
    for c in range(8):
        a(f"v_mov_b32 v{48+c}, 0")
    for i in range(8):
        a(f"s_waitcnt vmcnt({7-i})")
        for d in range(4):
            a(f"v_lshlrev_b32 v4, 16, v{16+4*i+d}")
            a(f"v_and_b32 v5, s41, v{16+4*i+d}")
            a(f"v_pk_add_f32 {vr(48+2*d,2)}, {vr(48+2*d,2)}, v[4:5]")
    a("v_lshlrev_b32 v6, 8, v2")
    a("v_lshl_add_u32 v6, v1, 5, v6")
    a("ds_write_b128 v6, v[48:51]")
    a("ds_write_b128 v6, v[52:55] offset:16")
    a("s_waitcnt lgkmcnt(0)")
    a("s_barrier")
    a("v_and_b32 v1, 63, v0")
    a("v_lshrrev_b32 v2, 6, v0")
    a("v_lshlrev_b32 v6, 11, v2")
    a("v_lshl_add_u32 v6, v1, 2, v6")
    for i in range(8):
        a(f"ds_read_b32 v{16+i}, v6 offset:{256*i}")
    a("s_waitcnt lgkmcnt(0)")
    for i in range(1, 8):
        a(f"v_add_f32 v16, v16, v{16+i}")
    a("v_lshlrev_b32 v6, 2, v0")
    a("ds_write_b32 v6, v16 offset:16384")
    a("s_waitcnt lgkmcnt(0)")
    a("s_barrier")
    a("v_cmp_gt_u32 vcc, 64, v0")
    a("s_and_saveexec_b64 s[42:43], vcc")
    a("s_cbranch_execz K1_END")
    for i in range(8):
        a(f"ds_read_b32 v{16+i}, v6 offset:{16384+256*i}")
    a("s_waitcnt lgkmcnt(0)")
    for i in range(1, 8):
        a(f"v_add_f32 v16, v16, v{16+i}")
    a("s_lshl_b32 s36, s2, 8")
    a(f"s_add_u32 s36, s36, {WS_CS}")
    a("buffer_store_dword v16, v6, s[24:27], s36 offen")
    a("K1_END:")
    a("s_endpgm")
    return dict(name="k1_kernel", vgpr=128, accum=128, sgpr=48, grid=288, block=512, lds=XOFF + 32768)


def k2(a):
    a("k2_kernel:")
    a("s_cmp_ge_u32 s2, 256")
    a("s_cbranch_scc1 K2_END")
    a("s_load_dwordx2 s[4:5], s[0:1], 0")
    a("s_load_dwordx2 s[10:11], s[0:1], 80")
    a("s_and_b32 s28, s2, 31")
    a("s_lshr_b32 s30, s2, 5")
    a("v_lshrrev_b32 v1, 6, v0")
    a("v_readfirstlane_b32 s31, v1")
    a("v_and_b32 v1, 63, v0")
    a("v_and_b32 v2, 15, v0")
    a("v_lshrrev_b32 v3, 4, v1")
    a("v_lshrrev_b32 v4, 2, v1")
    a("v_lshlrev_b32 v4, 9, v4")
    a("v_and_b32 v5, 3, v1")
    a("v_lshl_add_u32 v4, v5, 4, v4")
    a("s_lshl_b32 s36, s28, 16")
    a("s_lshl_b32 s37, s30, 6")
    a("s_add_u32 s36, s36, s37")
    a("s_lshl_b32 s38, s31, 14")
    a("s_add_u32 s36, s36, s38")
    a("s_add_u32 s39, s36, 8192")
    a("s_lshl_b32 s38, s31, 11")
    a("s_lshl_b32 s40, s31, 4")
    a("v_add_u32 v6, s40, v2")
    a("v_lshl_add_u32 v7, v6, 5, s28")
    a("v_sub_u32 v8, 0x800, v7")
    a("v_and_b32 v8, 0x7ff, v8")
    a("v_lshlrev_b32 v7, 10, v7")
    a("v_lshl_add_u32 v7, v3, 4, v7")
    a("v_lshlrev_b32 v8, 10, v8")
    a("v_lshl_add_u32 v9, v3, 4, s37")
    a("v_sub_u32 v10, 1008, v9")
    a("v_add_u32 v10, v8, v10")
    a("v_sub_u32 v11, 1024, v9")
    a("v_cmp_eq_u32 vcc, 0, v9")
    a("v_mov_b32 v12, 512")
    a("v_cndmask_b32 v11, v11, v12, vcc")
    a("v_add_u32 v11, v8, v11")
    a("v_add_u32 v9, v8, v9")
    a("s_waitcnt lgkmcnt(0)")
    srd(a, 12, 4, 5, 2097152)
    srd(a, 24, 10, 11, WS_SIZE)
    srd_off(a, 16, 10, 11, WS_H, 2097152)
    a("s_mov_b32 m0, s38")
    a("buffer_load_dwordx4 v4, s[24:27], s36 offen lds")
    a("s_add_u32 s38, s38, 1024")
    a("s_mov_b32 m0, s38")
    a("buffer_load_dwordx4 v4, s[24:27], s39 offen lds")
    a("s_cmp_lg_u32 s31, 0")
    a("s_cbranch_scc1 K2_NOGC")
    a("v_lshlrev_b32 v12, 4, v1")
    a("s_lshl_b32 s39, s28, 10")
    a(f"s_add_u32 s39, s39, {WS_GC}")
    a("s_mov_b32 m0, 8192")
    a("buffer_load_dwordx4 v12, s[24:27], s39 offen lds")
    a("K2_NOGC:")
    XA, XM, X0 = 16, 20, 24
    a(f"buffer_load_dwordx4 {vr(XA,4)}, v7, s[12:15], s37 offen")
    a(f"buffer_load_dwordx4 {vr(XM,4)}, v10, s[12:15], 0 offen")
    a(f"buffer_load_ushort v{X0}, v11, s[12:15], 0 offen")
    E = 32
    a("v_lshlrev_b32 v12, 2, v3")
    a("v_mul_u32_u24 v12, v6, v12")
    a("s_mov_b32 s40, 0x3c800000")
    a("v_mul_u32_u24 v13, 13, v6")
    for st in range(4):
        for jj in range(4):
            a("v_and_b32 v14, 63, v12")
            a("v_cvt_f32_u32 v14, v14")
            a("v_mul_f32 v14, s40, v14")
            a("v_cos_f32 v15, v14")
            a("v_sin_f32 v14, v14")
            if jj < 3:
                a("v_add_u32 v12, v12, v6")
            else:
                a("v_add_u32 v12, v12, v13")
            a(f"v_cvt_pk_bf16_f32 v{E+4*st+jj}, v15, v14")
    a("v_lshrrev_b32 v12, 2, v2")
    a("v_lshl_add_u32 v12, v3, 3, v12")
    a("v_lshlrev_b32 v13, 3, v12")
    a("v_lshlrev_b32 v12, 6, v12")
    a("v_lshl_add_u32 v12, v5, 4, v12")
    ACC = 48
    for i in range(12):
        a(f"v_mov_b32 v{ACC+i}, 0")
    a("s_waitcnt vmcnt(3)")
    a("s_barrier")
    AF = 64
    for st in range(4):
        for b in range(2):
            for i in range(2):
                a(f"ds_read_b64_tr_b16 {vr(AF+16*0+st*8+b*4+2*i,2)}, v12 offset:{2048*st+256*i+8*b}")
    for st in range(4):
        a(f"s_waitcnt lgkmcnt({12-4*st})")
        for b in range(2):
            a(f"v_mfma_f32_16x16x32_bf16 {vr(ACC+4*b,4)}, {vr(AF+st*8+b*4,4)}, {vr(E+4*st,4)}, {vr(ACC+4*b,4)}")
    a("s_cmp_lg_u32 s30, 0")
    a("s_cbranch_scc1 K2_NODC")
    for st in range(4):
        for i in range(2):
            a(f"ds_read_b64_tr_b16 {vr(96+st*4+2*i,2)}, v13 offset:{8192+256*st+32*i}")
    a("s_waitcnt lgkmcnt(0)")
    for st in range(4):
        a(f"v_mfma_f32_16x16x32_bf16 {vr(ACC+8,4)}, {vr(96+st*4,4)}, {vr(E+4*st,4)}, {vr(ACC+8,4)}")
    a("v_cmp_gt_u32 vcc, 16, v1")
    a("s_nop 7")
    a(f"v_cndmask_b32 v60, v{ACC}, v{ACC+8}, vcc")
    a("s_branch K2_EPI")
    a("K2_NODC:")
    a("s_nop 7")
    a(f"v_mov_b32 v60, v{ACC}")
    a("K2_EPI:")
    a("s_mov_b32 s41, 0xffff0000")
    Y = 64
    for q in range(4):
        a(f"v_cvt_pk_bf16_f32 v{80+q}, v{ACC+2*q}, v{ACC+2*q+1}")
    a("v_cvt_pk_bf16_f32 v84, v60, v60")
    for q in range(4):
        a(f"v_lshlrev_b32 v{Y+2*q}, 16, v{80+q}")
        a(f"v_and_b32 v{Y+2*q+1}, s41, v{80+q}")
    a("v_lshlrev_b32 v60, 16, v84")
    a("s_waitcnt vmcnt(0)")
    for q in range(4):
        a(f"v_lshlrev_b32 v72, 16, v{XA+q}")
        a(f"v_and_b32 v73, s41, v{XA+q}")
        a(f"v_add_f32 v72, v72, v{60 if q == 0 else Y+2*q}")
        a(f"v_add_f32 v73, v73, v{Y+2*q+1}")
        a(f"v_cvt_pk_bf16_f32 v{88+q}, v72, v73")
    a("buffer_store_dwordx4 v[88:91], v7, s[16:19], s37 offen")
    def win(dst, el):
        d = XM + el // 2
        if el & 1:
            a(f"v_and_b32 v{dst}, s41, v{d}")
        else:
            a(f"v_lshlrev_b32 v{dst}, 16, v{d}")
    for q in range(4):
        j0, j1 = 2 * q, 2 * q + 1
        if j0 == 0:
            a(f"v_lshlrev_b32 v72, 16, v{X0}")
        else:
            win(72, 8 - j0)
        win(73, 8 - j1)
        a(f"v_add_f32 v72, v72, v{Y+j0}")
        a(f"v_add_f32 v73, v73, v{Y+j1}")
        a(f"v_cvt_pk_bf16_f32 v{92+q}, v72, v73")
    a("buffer_store_dwordx4 v[92:95], v9, s[16:19], 0 offen offset:512")
    a("K2_END:")
    a("s_endpgm")
    return dict(name="k2_kernel", vgpr=112, accum=112, sgpr=48, grid=256, block=256, lds=9216)


def k3(a):
    a("k3_kernel:")
    a("s_cmp_ge_u32 s2, 256")
    a("s_cbranch_scc1 K3_END")
    a("s_load_dwordx2 s[4:5], s[0:1], 48")
    a("s_load_dwordx2 s[10:11], s[0:1], 80")
    a("s_and_b32 s28, s2, 7")
    a("s_lshr_b32 s29, s2, 3")
    a("s_lshr_b32 s30, s28, 1")
    a("s_lshl_b32 s30, s30, 2")
    a("s_and_b32 s3, s29, 3")
    a("s_add_u32 s30, s30, s3")
    a("s_and_b32 s28, s28, 1")
    a("s_lshl_b32 s28, s28, 3")
    a("s_lshr_b32 s29, s29, 2")
    a("s_add_u32 s28, s28, s29")
    a("s_mul_i32 s29, s28, 224")
    a("v_lshrrev_b32 v1, 6, v0")
    a("v_readfirstlane_b32 s31, v1")
    a("v_and_b32 v1, 63, v0")
    a("v_and_b32 v2, 15, v0")
    a("v_lshrrev_b32 v3, 4, v1")
    a("s_lshl_b32 s32, s30, 7")
    a("s_lshl_b32 s33, s31, 5")
    a("s_add_u32 s32, s32, s33")
    a("v_add_u32 v4, s32, v2")
    a("v_lshlrev_b32 v4, 10, v4")
    a("v_lshl_add_u32 v4, v3, 4, v4")
    a("s_mov_b32 s33, 16384")
    a("s_waitcnt lgkmcnt(0)")
    srd(a, 12, 4, 5, 1835008)
    srd_off(a, 16, 10, 11, WS_H, 2097152)
    srd_off(a, 20, 10, 11, WS_H1, 7340032)
    srd(a, 24, 10, 11, WS_SIZE)
    AF = 128
    BF = 64
    OA = 16
    OD = 24
    OS = 31

    def aloads(c):
        for s in range(4 * c, 4 * c + 4):
            a(f"buffer_load_dwordx4 {vr(AF+8*s,4)}, v4, s[16:19], 0 offen offset:{64*s}")
            a(f"buffer_load_dwordx4 {vr(AF+8*s+4,4)}, v4, s[16:19], s33 offen offset:{64*s}")
    aloads(0)
    a("s_mov_b32 s34, 4682")
    a("s_mov_b32 s35, 3584")
    for i in range(7):
        a(f"v_add_u32 v5, {64*i}, v1")
        a("v_mul_u32_u24 v6, s34, v5")
        a("v_lshrrev_b32 v6, 16, v6")
        a("v_mul_u32_u24 v7, 14, v6")
        a("v_sub_u32 v5, v5, v7")
        a("v_and_b32 v7, 0x13, v6")
        a("v_and_b32 v8, 4, v6")
        a("v_lshl_add_u32 v7, v8, 1, v7")
        a("v_and_b32 v8, 8, v6")
        a("v_lshrrev_b32 v8, 1, v8")
        a("v_add_u32 v7, v7, v8")
        a("v_mul_u32_u24 v8, s35, v7")
        a(f"v_lshl_add_u32 v{OA+i}, v5, 4, v8")
        a("v_sub_u32 v8, 31, v7")
        a("v_mul_u32_u24 v8, s35, v8")
        a(f"v_lshl_add_u32 v{OD+i}, v5, 4, v8")
        if i == 0:
            a("s_lshl_b32 s36, s31, 5")
            a("s_sub_u32 s36, 512, s36")
            a("v_sub_u32 v8, s36, v7")
            a("v_mov_b32 v9, 0x200")
            a("v_cmp_eq_u32 vcc, v8, v9")
            a("v_mov_b32 v9, 0x100")
            a("v_cndmask_b32 v8, v8, v9, vcc")
            a("v_mul_u32_u24 v8, s35, v8")
            a(f"v_lshl_add_u32 v{OS}, v5, 4, v8")

    def dma(c):
        a(f"s_add_u32 s36, s31, {4*c}")
        a("s_mul_i32 s37, s36, 7168")
        if c < 2:
            a("s_mul_i32 s38, s36, 114688")
            a("s_add_u32 s38, s38, s29")
        else:
            a("s_lshl_b32 s38, s36, 5")
            a("s_sub_u32 s38, 737, s38")
            a("s_mul_i32 s38, s38, 3584")
            a("s_add_u32 s38, s38, s29")
        for i in range(7):
            a("s_mov_b32 m0, s37")
            if c == 2 and i == 0:
                a(f"buffer_load_dwordx4 v{OS}, s[12:15], s29 offen lds")
            else:
                a(f"buffer_load_dwordx4 v{(OA if c < 2 else OD)+i}, s[12:15], s38 offen lds")
            if i < 6:
                a("s_add_u32 s37, s37, 1024")
    dma(0)
    for c in range(1, 4):
        aloads(c)
        dma(c)
    a("v_lshrrev_b32 v5, 1, v3")
    a("v_and_b32 v6, 1, v3")
    a("v_lshlrev_b32 v5, 4, v5")
    a("v_lshl_add_u32 v5, v6, 2, v5")
    a("v_lshrrev_b32 v6, 2, v2")
    a("v_add_u32 v5, v5, v6")
    a("v_mul_u32_u24 v5, 224, v5")
    a("v_and_b32 v6, 3, v1")
    a("v_lshl_add_u32 v5, v6, 3, v5")
    a("v_add_u32 v6, 57344, v5")
    for i in range(56):
        a(f"v_accvgpr_write_b32 a{i}, 0")
    a("v_mov_b32 v7, 0x3f803f80")
    for i in range(8):
        a(f"v_mov_b32 v{8+i}, 0")

    def brd(s):
        base = BF + 28 * (s & 1)
        vb = 5 if s < 8 else 6
        off = 7168 * (s & 7)
        for nb in range(7):
            for i in range(2):
                a(f"ds_read_b64_tr_b16 {vr(base+4*nb+2*i,2)}, v{vb} offset:{off+1792*i+32*nb}")
    CS = 32
    a("s_waitcnt vmcnt(45)")
    a("s_barrier")
    a("v_lshlrev_b32 v60, 4, v3")
    a("s_lshl_b32 s36, s29, 1")
    a(f"s_add_u32 s36, s36, {WS_CS}")
    for nb in range(7):
        a(f"buffer_load_dwordx4 {vr(CS+4*nb,4)}, v60, s[24:27], s36 offen offset:{64*nb}")
    brd(0)
    for s in range(16):
        if s < 15:
            if (s & 3) == 3:
                c = (s + 1) // 4
                a(f"s_waitcnt vmcnt({7+15*(3-c)})")
                a("s_barrier")
            brd(s + 1)
            a("s_waitcnt lgkmcnt(14)")
        else:
            a("s_waitcnt lgkmcnt(0)")
        base = BF + 28 * (s & 1)
        k = 0
        for nb in range(7):
            for aa in range(2):
                a(f"v_mfma_f32_16x16x32_bf16 {ar(28*aa+4*nb,4)}, {vr(base+4*nb,4)}, {vr(AF+8*s+4*aa,4)}, {ar(28*aa+4*nb,4)}")
                if k < 8:
                    aa2, d = k >> 2, k & 3
                    src = AF + 8 * s + 4 * aa2 + d
                    a(f"v_dot2_f32_bf16 v{8+4*aa2+(d&1)}, v{src}, v7, v{8+4*aa2+(d&1)}")
                    a(f"v_dot2_f32_bf16 v{10+4*aa2+(d&1)}, v{src}, v{src}, v{10+4*aa2+(d&1)}")
                k += 1
    a("v_add_f32 v8, v8, v9")
    a("v_add_f32 v10, v10, v11")
    a("v_add_f32 v12, v12, v13")
    a("v_add_f32 v14, v14, v15")
    for sw in ("v_permlane32_swap_b32", "v_permlane16_swap_b32"):
        for r in (8, 10, 12, 14):
            a(f"v_mov_b32 v{r+1}, v{r}")
        for r in (8, 10, 12, 14):
            a(f"{sw} v{r}, v{r+1}")
        for r in (8, 10, 12, 14):
            a(f"v_add_f32 v{r}, v{r}, v{r+1}")
    a("s_mov_b32 s40, 0x3b000000")
    a("s_mov_b32 s41, 0xffff0000")
    for aa in range(2):
        m, q = 8 + 4 * aa, 10 + 4 * aa
        a(f"v_mul_f32 v{m}, s40, v{m}")
        a(f"v_mul_f32 v{q}, s40, v{q}")
        a(f"v_fma_f32 v{q}, -v{m}, v{m}, v{q}")
        a(f"v_max_f32 v{q}, 0, v{q}")
        a(f"v_cvt_pk_bf16_f32 v{m}, -v{m}, -v{m}")
        a(f"v_and_b32 v{m}, s41, v{m}")
        a(f"v_cvt_pk_bf16_f32 v{q}, v{q}, v{q}")
        a(f"v_and_b32 v{q}, s41, v{q}")
        a(f"v_add_f32 v{q}, 0x3727c5ac, v{q}")
        a(f"v_cvt_pk_bf16_f32 v{q}, v{q}, v{q}")
        a(f"v_and_b32 v{q}, s41, v{q}")
        a(f"v_sqrt_f32 v{q}, v{q}")
        a(f"v_cvt_pk_bf16_f32 v{q}, v{q}, v{q}")
        a(f"v_and_b32 v{q}, s41, v{q}")
        a(f"v_rcp_f32 v{q}, v{q}")
    a("v_add_u32 v4, s32, v2")
    a("v_mul_lo_u32 v4, v4, s35")
    a("v_and_b32 v5, 1, v3")
    a("v_lshrrev_b32 v6, 1, v3")
    a("v_lshlrev_b32 v6, 4, v6")
    a("v_add_u32 v4, v4, v6")
    a("v_lshl_add_u32 v16, v5, 5, v4")
    a("s_mov_b32 s36, 57344")
    a("v_mul_u32_u24 v5, s36, v5")
    a("v_add_u32 v17, v4, v5")
    a("s_add_u32 s37, s29, s36")
    a("s_waitcnt vmcnt(0)")
    OUT = 64
    for aa in range(2):
        m, q = 8 + 4 * aa, 10 + 4 * aa
        for nb in range(7):
            for r in range(4):
                a(f"v_accvgpr_read_b32 v{120+r}, a{28*aa+4*nb+r}")
            for r in range(4):
                a(f"v_fma_f32 v{120+r}, v{m}, v{CS+4*nb+r}, v{120+r}")
            for r in range(4):
                a(f"v_mul_f32 v{120+r}, v{q}, v{120+r}")
            o = OUT + 16 * aa + 2 * nb if nb < 6 else 96 + 2 * aa
            a(f"v_cvt_pk_bf16_f32 v{o}, v120, v121")
            a(f"v_cvt_pk_bf16_f32 v{o+1}, v122, v123")
            a(f"v_pk_max_i16 v{o}, v{o}, 0")
            a(f"v_pk_max_i16 v{o+1}, v{o+1}, 0")
            if nb < 6 and (nb & 1):
                p = o - 2
                a(f"v_permlane16_swap_b32 v{p}, v{p+2}")
                a(f"v_permlane16_swap_b32 v{p+1}, v{p+3}")
                a(f"buffer_store_dwordx4 {vr(p,4)}, v16, s[20:23], s{29 if aa == 0 else 37} offen offset:{32*(nb-1)}")
    a("v_permlane16_swap_b32 v96, v98")
    a("v_permlane16_swap_b32 v97, v99")
    a("buffer_store_dwordx4 v[96:99], v17, s[20:23], s29 offen offset:192")
    a("K3_END:")
    a("s_endpgm")
    return dict(name="k3_kernel", vgpr=256 + 56, accum=256, sgpr=48, grid=256, block=256, lds=114688)


def k4(a):
    DEPTH = 7
    a("k4_kernel:")
    a("s_cmp_ge_u32 s2, 256")
    a("s_cbranch_scc1 K4_END")
    a("s_load_dwordx2 s[4:5], s[0:1], 56")
    a("s_load_dwordx2 s[6:7], s[0:1], 64")
    a("s_load_dwordx2 s[10:11], s[0:1], 80")
    a("s_and_b32 s28, s2, 7")
    a("s_lshr_b32 s29, s2, 3")
    a("s_lshl_b32 s30, s28, 2")
    a("s_and_b32 s3, s29, 3")
    a("s_add_u32 s30, s30, s3")
    a("s_lshr_b32 s28, s29, 2")
    a("v_lshrrev_b32 v1, 6, v0")
    a("v_readfirstlane_b32 s31, v1")
    a("v_and_b32 v1, 63, v0")
    a("v_and_b32 v2, 15, v0")
    a("v_lshrrev_b32 v3, 4, v1")
    a("s_lshl_b32 s32, s30, 6")
    a("s_mov_b32 s35, 3584")
    a("v_add_u32 v4, s32, v2")
    a("v_mul_lo_u32 v4, v4, s35")
    a("v_lshl_add_u32 v4, v3, 4, v4")
    a("s_mul_i32 s33, s31, 896")
    a("v_add_u32 v4, s33, v4")
    a("s_mov_b32 s44, 0")
    a("s_mov_b32 s45, 57344")
    a("s_mov_b32 s46, 114688")
    a("s_mov_b32 s47, 172032")
    a("v_lshrrev_b32 v5, 3, v1")
    a("v_and_b32 v6, 3, v5")
    a("v_and_b32 v7, 4, v5")
    a("v_lshl_add_u32 v6, v7, 1, v6")
    a("v_lshlrev_b32 v6, 10, v6")
    a("v_lshrrev_b32 v7, 1, v5")
    a("v_bfe_u32 v8, v1, 1, 2")
    a("v_xor_b32 v7, v7, v8")
    a("v_lshl_add_u32 v6, v7, 5, v6")
    a("v_and_b32 v7, 1, v1")
    a("v_lshl_add_u32 v5, v7, 4, v6")
    a("s_mul_i32 s36, s31, 458752")
    a("s_lshl_b32 s37, s28, 7")
    a("s_add_u32 s36, s36, s37")
    a("s_mul_i32 s38, s31, 28672")
    a("s_waitcnt lgkmcnt(0)")
    srd(a, 12, 4, 5, 1835008)
    srd_off(a, 16, 10, 11, WS_H, 2097152)
    srd_off(a, 20, 10, 11, WS_H1, 7340032)
    srd(a, 24, 6, 7, 2097152)
    AF = 144
    BF = 32
    ACC = 64

    def issue(s):
        slot = s % DEPTH
        for aa in range(4):
            a(f"buffer_load_dwordx4 {vr(AF+16*slot+4*aa,4)}, v4, s[20:23], s{44+aa} offen offset:{64*s}")
        for i, ro in enumerate((0, 4096, 16384, 20480)):
            a(f"s_add_u32 s39, s38, {4096*slot+1024*i}")
            a("s_mov_b32 m0, s39")
            a(f"s_add_u32 s40, s36, {32768*s+ro}")
            a("buffer_load_dwordx4 v5, s[12:15], s40 offen lds")
    for s in range(DEPTH):
        issue(s)
    a("v_lshrrev_b32 v6, 1, v3")
    a("v_and_b32 v7, 1, v3")
    a("v_lshlrev_b32 v6, 4, v6")
    a("v_lshl_add_u32 v6, v7, 2, v6")
    a("v_lshrrev_b32 v8, 2, v2")
    a("v_add_u32 v6, v6, v8")
    a("v_lshlrev_b32 v6, 7, v6")
    a("v_and_b32 v9, 3, v1")
    a("v_lshl_add_u32 v6, v9, 3, v6")
    a("v_add_u32 v6, s38, v6")
    a("v_lshrrev_b32 v8, 1, v8")
    a("v_lshl_add_u32 v7, v7, 1, v8")
    for nb in range(4):
        a(f"v_xor_b32 v8, {nb}, v7")
        a(f"v_lshl_add_u32 v{10+nb}, v8, 5, v6")
    for i in range(64):
        a(f"v_mov_b32 v{ACC+i}, 0")

    def brd(s):
        base = BF + 16 * (s & 1)
        slot = s % DEPTH
        for nb in range(4):
            for i in range(2):
                a(f"ds_read_b64_tr_b16 {vr(base+4*nb+2*i,2)}, v{10+nb} offset:{4096*slot+1024*i}")
    a("s_waitcnt vmcnt(48)")
    brd(0)
    for s in range(14):
        if s < 13:
            n = 40 if s <= 7 else 8 * (12 - s)
            a(f"s_waitcnt vmcnt({n})")
            brd(s + 1)
            a("s_waitcnt lgkmcnt(8)")
        else:
            a("s_waitcnt lgkmcnt(0)")
        base = BF + 16 * (s & 1)
        slot = s % DEPTH
        for tb in range(4):
            for mb in range(4):
                a(f"v_mfma_f32_16x16x32_bf16 {vr(ACC+16*tb+4*mb,4)}, {vr(base+4*mb,4)}, {vr(AF+16*slot+4*tb,4)}, {vr(ACC+16*tb+4*mb,4)}")
        if s + DEPTH < 14:
            issue(s + DEPTH)
    a("v_lshrrev_b32 v6, 2, v0")
    a("v_and_b32 v7, 3, v0")
    a("v_add_u32 v8, s32, v6")
    a("v_lshlrev_b32 v8, 10, v8")
    a("v_lshl_add_u32 v9, v7, 5, s37")
    a("v_add_u32 v14, v8, v9")
    HR = 16
    a("s_cmp_ge_u32 s28, 4")
    a("s_cbranch_scc1 K4_MIR")
    a(f"buffer_load_dwordx4 {vr(HR,4)}, v14, s[16:19], 0 offen")
    a(f"buffer_load_dwordx4 {vr(HR+4,4)}, v14, s[16:19], 0 offen offset:16")
    a("s_branch K4_RED")
    a("K4_MIR:")
    a("v_sub_u32 v15, 1504, v9")
    a("v_add_u32 v15, v8, v15")
    a(f"buffer_load_dwordx4 {vr(HR,4)}, v15, s[16:19], 0 offen offset:16")
    a(f"buffer_load_dwordx4 {vr(HR+4,4)}, v15, s[16:19], 0 offen")
    a("v_sub_u32 v26, 1536, v9")
    a("v_mov_b32 v27, 0x400")
    a("v_cmp_eq_u32 vcc, v26, v27")
    a("v_mov_b32 v27, 0x200")
    a("v_cndmask_b32 v26, v26, v27, vcc")
    a("v_add_u32 v26, v8, v26")
    a(f"buffer_load_ushort v{HR+8}, v26, s[16:19], 0 offen")
    a(f"buffer_load_ushort v{HR+9}, v15, s[16:19], 0 offen offset:16")
    a("K4_RED:")
    a("v_mul_u32_u24 v26, 272, v2")
    a("v_lshl_add_u32 v26, v3, 4, v26")
    a("v_add_u32 v26, s38, v26")
    a("s_nop 7")
    for tb in range(4):
        for mb in range(4):
            a(f"ds_write_b128 v26, {vr(ACC+16*tb+4*mb,4)} offset:{4352*tb+64*mb}")
    a("v_mul_u32_u24 v27, 272, v6")
    a("v_lshl_add_u32 v27, v7, 6, v27")
    a("v_add_u32 v28, 57344, v27")
    a("s_waitcnt lgkmcnt(0)")
    a("s_barrier")
    R = 64
    for w in range(4):
        vb = 27 if w < 2 else 28
        for q in range(4):
            a(f"ds_read_b128 {vr(R+16*w+4*q,4)}, v{vb} offset:{28672*(w&1)+16*q}")
    a("s_mov_b32 s41, 0xffff0000")
    a("s_waitcnt lgkmcnt(8)")
    for i in range(0, 16, 2):
        a(f"v_pk_add_f32 {vr(R+i,2)}, {vr(R+i,2)}, {vr(R+16+i,2)}")
    a("s_waitcnt lgkmcnt(0)")
    for i in range(0, 16, 2):
        a(f"v_pk_add_f32 {vr(R+32+i,2)}, {vr(R+32+i,2)}, {vr(R+48+i,2)}")
    for i in range(0, 16, 2):
        a(f"v_pk_add_f32 {vr(R+i,2)}, {vr(R+i,2)}, {vr(R+32+i,2)}")
    for i in range(8):
        a(f"v_cvt_pk_bf16_f32 v{R+16+i}, v{R+2*i}, v{R+2*i+1}")
    for i in range(8):
        a(f"v_lshlrev_b32 v{R+2*i}, 16, v{R+16+i}")
        a(f"v_and_b32 v{R+2*i+1}, s41, v{R+16+i}")
    a("s_waitcnt vmcnt(0)")
    a("s_cmp_ge_u32 s28, 4")
    a("s_cbranch_scc1 K4_MIR2")
    for i in range(8):
        a(f"v_lshlrev_b32 v30, 16, v{HR+i}")
        a(f"v_and_b32 v31, s41, v{HR+i}")
        a(f"v_pk_add_f32 v[30:31], v[30:31], {vr(R+2*i,2)}")
        a(f"v_cvt_pk_bf16_f32 v{R+32+i}, v30, v31")
    a("s_branch K4_ST")
    a("K4_MIR2:")
    for q in range(2):
        for jp in range(4):
            for h in range(2):
                j = 2 * jp + h
                if j == 0:
                    a(f"v_lshlrev_b32 v30, 16, v{HR+8+q}")
                else:
                    el = 8 - j
                    d = HR + 4 * q + el // 2
                    if el & 1:
                        a(f"v_and_b32 v{30+h}, s41, v{d}")
                    else:
                        a(f"v_lshlrev_b32 v{30+h}, 16, v{d}")
            a(f"v_pk_add_f32 v[30:31], v[30:31], {vr(R+8*q+2*jp,2)}")
            a(f"v_cvt_pk_bf16_f32 v{R+32+4*q+jp}, v30, v31")
    a("K4_ST:")
    a(f"buffer_store_dwordx4 {vr(R+32,4)}, v14, s[24:27], 0 offen")
    a(f"buffer_store_dwordx4 {vr(R+36,4)}, v14, s[24:27], 0 offen offset:16")
    a("K4_END:")
    a("s_endpgm")
    return dict(name="k4_kernel", vgpr=256, accum=256, sgpr=48, grid=256, block=256, lds=114688)


def main(path):
    infos, bodies = [], []
    for k in (k1, k2, k3, k4):
        a = Asm()
        info = k(a)
        infos.append(info)
        bodies.append(a.finalize())
    out = HEADER
    for i in infos:
        out += f"; @launch kernel={i['name']} grid=({i['grid']},1,1) block=({i['block']},1,1) lds={i['lds']}\n"
    out += '.amdgcn_target "amdgcn-amd-amdhsa--gfx950"\n.text\n'
    for i, b in zip(infos, bodies):
        out += f".globl {i['name']}\n.p2align 8\n.type {i['name']},@function\n" + b
    out += '.section .rodata,"a"\n'
    for i in infos:
        out += f""".p2align 6
.amdhsa_kernel {i['name']}
  .amdhsa_next_free_vgpr {i['vgpr']}
  .amdhsa_next_free_sgpr {i['sgpr']}
  .amdhsa_accum_offset {i['accum']}
  .amdhsa_group_segment_fixed_size 0
  .amdhsa_kernarg_size 88
  .amdhsa_user_sgpr_count 2
  .amdhsa_user_sgpr_kernarg_segment_ptr 1
  .amdhsa_system_sgpr_workgroup_id_x 1
  .amdhsa_float_denorm_mode_32 3
.end_amdhsa_kernel
"""
    open(path, "w").write(out)


if __name__ == "__main__":
    main(sys.argv[1] if len(sys.argv) > 1 else "sequential_preLN__spectral_fnet__dense_activation_relu__prompt.s")
```

```python
import sys, os
from asmlib import Asm

WS_G = 0x000000
WS_CS = 0x210000
WS_ST = 0x220000
WS_H = 0x400000
WS_H1 = 0x800000
WS_SIZE = 0x1000000

HEADER = """; FNet block: out = h + FFN(LN(h)),  h = x + Re(DFT_seq(DFT_hid(LN(x))))
"""


def srd(a, d, lo, hi, size):
    a(f"s_mov_b32 s{d}, s{lo}")
    a(f"s_and_b32 s{d+1}, s{hi}, 0xffff")
    a(f"s_mov_b32 s{d+2}, {size}")
    a(f"s_mov_b32 s{d+3}, 0x00020000")


def srd_off(a, d, lo, hi, off, size):
    a(f"s_add_u32 s{d}, s{lo}, {off}")
    a(f"s_addc_u32 s{d+1}, s{hi}, 0")
    a(f"s_and_b32 s{d+1}, s{d+1}, 0xffff")
    a(f"s_mov_b32 s{d+2}, {size}")
    a(f"s_mov_b32 s{d+3}, 0x00020000")


def vr(b, n=1):
    return f"v{b}" if n == 1 else f"v[{b}:{b+n-1}]"


class VM:
    def __init__(self, a):
        self.a = a
        self.ops = []

    def __call__(self, text, tag):
        self.a(text)
        self.ops.append(tag)

    def count(self, *tags):
        idx = max(i for i, t in enumerate(self.ops) if t in tags)
        return len(self.ops) - 1 - idx

    def wait(self, *tags, extra=""):
        n = min(self.count(*tags), 63)
        self.a(f"s_waitcnt vmcnt({n}){extra}")


def k1(a):
    PITCH = 544
    XE, XO = 0, 32 * PITCH
    XN256 = 64 * PITCH
    EXCH = 35072
    WST = EXCH + 8192
    a("k1_kernel:")
    a("s_cmp_ge_u32 s2, 256")
    a("s_cbranch_scc1 K1_END")
    a("s_load_dwordx2 s[4:5], s[0:1], 0")
    a("s_load_dwordx2 s[6:7], s[0:1], 24")
    a("s_load_dwordx2 s[8:9], s[0:1], 32")
    a("s_load_dwordx2 s[10:11], s[0:1], 80")
    a("s_and_b32 s28, s2, 7")
    a("s_lshr_b32 s29, s2, 3")
    a("s_and_b32 s30, s29, 3")
    a("s_lshr_b32 s29, s29, 2")
    a("s_lshl_b32 s29, s29, 3")
    a("s_add_u32 s28, s28, s29")
    a("v_lshrrev_b32 v1, 6, v0")
    a("v_readfirstlane_b32 s31, v1")
    a("v_and_b32 v1, 63, v0")
    a("v_and_b32 v2, 15, v0")
    a("v_lshrrev_b32 v3, 4, v1")
    a("s_and_b32 s32, s31, 3")
    a("s_lshr_b32 s33, s31, 2")
    a("v_lshlrev_b32 v4, 16, v3")
    a("v_lshl_add_u32 v5, v2, 4, v4")
    a("v_lshlrev_b32 v6, 4, v2")
    a("v_sub_u32 v6, 752, v6")
    a("v_add_u32 v6, v4, v6")
    a("s_lshl_b32 s36, s31, 18")
    a("s_lshl_b32 s37, s28, 10")
    a("s_add_u32 s36, s36, s37")
    a("s_lshl_b32 s38, s30, 6")
    a("s_lshl_b32 s39, s32, 4")
    a("s_add_u32 s38, s38, s39")
    a("v_lshrrev_b32 v7, 3, v1")
    a("v_and_b32 v8, 7, v1")
    a("v_lshrrev_b32 v9, 1, v7")
    a("v_xor_b32 v9, v8, v9")
    a("v_add_u32 v7, s38, v7")
    a("v_lshlrev_b32 v10, 10, v7")
    a("v_add_u32 v11, 0x2000, v10")
    a("v_xor_b32 v12, 4, v9")
    a("v_lshl_add_u32 v11, v12, 4, v11")
    a("v_add_u32 v7, s33, v7")
    a("v_cmp_eq_u32 vcc, 0, v7")
    a("v_mov_b32 v12, 0x40000")
    a("v_cndmask_b32 v10, v10, v12, vcc")
    a("v_lshl_add_u32 v10, v9, 4, v10")
    a("s_lshl_b32 s39, s31, 13")
    a(f"s_add_u32 s39, s39, {WST}")
    a("s_waitcnt lgkmcnt(0)")
    srd(a, 12, 4, 5, 2097152)
    a("s_cmp_eq_u32 s33, 0")
    a("s_cselect_b32 s16, s6, s8")
    a("s_cselect_b32 s17, s7, s9")
    a("s_and_b32 s17, s17, 0xffff")
    a("s_mov_b32 s18, 524288")
    a("s_mov_b32 s19, 0x00020000")
    srd(a, 24, 10, 11, WS_SIZE)
    XA, XB, MA, MB = 16, 20, 24, 28
    a(f"buffer_load_dwordx4 {vr(XA,4)}, v5, s[12:15], s36 offen")
    a(f"buffer_load_dwordx4 {vr(XB,4)}, v5, s[12:15], s36 offen offset:256")
    a(f"buffer_load_dwordx4 {vr(MA,4)}, v6, s[12:15], s36 offen offset:256")
    a(f"buffer_load_dwordx4 {vr(MB,4)}, v6, s[12:15], s36 offen")
    a("s_mov_b32 s40, 0")
    a("s_mov_b32 s41, s39")
    for kq in range(4):
        for hb in range(2):
            a("s_mov_b32 m0, s41")
            a(f"buffer_load_dwordx4 v{10+hb}, s[16:19], s40 offen lds")
            a("s_add_u32 s41, s41, 1024")
        a("s_add_u32 s40, s40, 128")
    TC, TS, TN = 96, 100, 104
    a("s_lshl_b32 s40, s33, 4")
    a("v_add_u32 v7, s40, v2")
    a("v_lshl_add_u32 v8, v3, 9, s28")
    a("v_mul_u32_u24 v9, v7, v8")
    a("v_lshlrev_b32 v10, 6, v7")
    a("s_mov_b32 s40, 0x3a000000")
    for jj in range(4):
        for h in range(2):
            a("v_and_b32 v11, 0x7ff, v9")
            a("v_cvt_f32_u32 v11, v11")
            a("v_mul_f32 v11, s40, v11")
            a(f"v_cos_f32 v{12+h}, v11")
            a(f"v_sin_f32 v{14+h}, v11")
            a("v_add_u32 v9, v9, v10")
        a(f"v_cvt_pk_bf16_f32 v{TC+jj}, v12, v13")
        a(f"v_cvt_pk_bf16_f32 v{TS+jj}, v14, v15")
        a(f"v_xor_b32 v{TN+jj}, 0x80008000, v{TS+jj}")
    a("s_and_b32 s40, s31, 1")
    a("s_lshl_b32 s40, s40, 4")
    a("s_lshr_b32 s41, s31, 1")
    a("s_lshl_b32 s41, s41, 2")
    a("s_add_u32 s40, s40, s41")
    a("v_add_u32 v8, s40, v3")
    a(f"v_mul_u32_u24 v8, {PITCH}, v8")
    a("v_lshl_add_u32 v8, v2, 4, v8")
    a(f"v_mul_u32_u24 v9, {PITCH}, v2")
    a("v_lshl_add_u32 v9, v3, 4, v9")
    a(f"s_mul_i32 s40, s33, {XO}")
    a("v_add_u32 v9, s40, v9")
    a("v_lshrrev_b32 v10, 1, v2")
    a("v_xor_b32 v10, v3, v10")
    a("v_xor_b32 v11, 4, v10")
    a("v_lshl_add_u32 v12, v2, 7, s39")
    a("v_lshl_add_u32 v10, v10, 4, v12")
    a("v_lshl_add_u32 v11, v11, 4, v12")
    a("v_and_b32 v12, 1, v2")
    a("v_lshlrev_b32 v12, 31, v12")
    a("v_or_b32 v108, 1.0, v12")
    a("s_cmp_eq_u32 s33, 0")
    a("s_cselect_b32 s40, 1.0, 0")
    a("v_mul_f32 v108, s40, v108")
    a("s_lshl_b32 s40, s31, 4")
    a("v_lshl_add_u32 v109, v3, 2, s40")
    a("v_lshlrev_b32 v110, 5, v3")
    a("v_mov_b32 v4, 0x3f803f80")
    a("v_mov_b32 v12, 0")
    a("v_mov_b32 v13, 0")
    a("v_mov_b32 v14, 0")
    a("v_mov_b32 v15, 0")
    a("s_mov_b32 s41, 0xffff0000")
    a("s_waitcnt vmcnt(8)")
    for i in range(16):
        a(f"v_dot2_f32_bf16 v{12+(i&1)}, v{XA+i}, v4, v{12+(i&1)}")
        a(f"v_dot2_f32_bf16 v{14+(i&1)}, v{XA+i}, v{XA+i}, v{14+(i&1)}")
    a("v_add_f32 v12, v12, v13")
    a("v_add_f32 v14, v14, v15")
    A1, B1, A2, B2 = 32, 40, 48, 56
    unp = []
    for (src, dst) in ((XA, A1), (XB, A2)):
        for d in range(4):
            unp.append(f"v_lshlrev_b32 v{dst+2*d}, 16, v{src+d}")
            unp.append(f"v_and_b32 v{dst+2*d+1}, s41, v{src+d}")
    for (src, dst, m) in ((MA, B1, 64), (MB, B2, 65)):
        for el in range(8):
            r = m if el == 0 else dst + 8 - el
            if el & 1:
                unp.append(f"v_and_b32 v{r}, s41, v{src+el//2}")
            else:
                unp.append(f"v_lshlrev_b32 v{r}, 16, v{src+el//2}")
    mods = ("quad_perm:[1,0,3,2]", "quad_perm:[2,3,0,1]", "row_half_mirror", "row_mirror")
    for i, mod in enumerate(mods):
        for u in unp[4 * i:4 * i + 2]:
            a(u)
        a(f"v_add_f32_dpp v12, v12, v12 {mod} row_mask:0xf bank_mask:0xf")
        a(f"v_add_f32_dpp v14, v14, v14 {mod} row_mask:0xf bank_mask:0xf")
        for u in unp[4 * i + 2:4 * i + 4]:
            a(u)
    a("s_mov_b32 s40, 0x3b000000")
    a("v_mul_f32 v12, s40, v12")
    a("v_mul_f32 v14, s40, v14")
    a("v_fma_f32 v14, -v12, v12, v14")
    a("v_max_f32 v14, 0, v14")
    a("v_add_f32 v14, 0x3727c5ac, v14")
    a("v_rsq_f32 v14, v14")
    for u in unp[16:]:
        a(u)
    a("v_mov_b32_dpp v66, v64 row_ror:1 row_mask:0xf bank_mask:0xf")
    a("v_mov_b32_dpp v67, v65 row_ror:1 row_mask:0xf bank_mask:0xf")
    a("v_cmp_eq_u32 vcc, 0, v2")
    a("v_mul_f32 v13, -2.0, v12")
    a("v_mul_f32 v68, v13, v14")
    a(f"v_cndmask_b32 v{B1}, v66, v12, vcc")
    a(f"v_cndmask_b32 v{B2}, v67, v66, vcc")
    a("v_sub_f32 v67, v67, v12")
    a("v_mul_f32 v67, v67, v14")
    OE, OO = 72, 80
    for st, (A, B) in enumerate(((A1, B1), (A2, B2))):
        for q in range(4):
            t = 88 + 4 * (q & 1)
            a(f"v_pk_add_f32 {vr(t,2)}, {vr(A+2*q,2)}, {vr(B+2*q,2)}")
            a(f"v_pk_add_f32 {vr(t+2,2)}, {vr(A+2*q,2)}, {vr(B+2*q,2)} neg_lo:[0,1] neg_hi:[0,1]")
            a(f"v_pk_fma_f32 {vr(t,2)}, {vr(t,2)}, v[14:15], v[68:69] op_sel_hi:[1,0,0]")
            a(f"v_pk_mul_f32 {vr(t+2,2)}, {vr(t+2,2)}, v[14:15] op_sel_hi:[1,0]")
            a(f"v_cvt_pk_bf16_f32 v{OE+4*st+q}, v{t}, v{t+1}")
            a(f"v_cvt_pk_bf16_f32 v{OO+4*st+q}, v{t+2}, v{t+3}")
        a(f"ds_write_b128 v8, {vr(OE+4*st,4)} offset:{256*st}")
        a(f"ds_write_b128 v8, {vr(OO+4*st,4)} offset:{XO+256*st}")
    a("s_and_saveexec_b64 s[42:43], vcc")
    a(f"ds_write_b32 v109, v67 offset:{XN256}")
    a("s_mov_b64 exec, s[42:43]")
    a("s_waitcnt vmcnt(0) lgkmcnt(0)")
    a("s_barrier")
    ACC = 112
    a(f"ds_read_b128 {vr(ACC,4)}, v110 offset:{XN256}")
    a(f"ds_read_b128 {vr(ACC+4,4)}, v110 offset:{XN256+16}")
    FR = 16

    def rd(s):
        base = FR + 12 * (s & 3)
        a(f"ds_read_b128 {vr(base,4)}, v9 offset:{64*s}")
        a(f"ds_read_b128 {vr(base+4,4)}, v9 offset:{16*PITCH+64*s}")
        a(f"ds_read_b128 {vr(base+8,4)}, v{10+(s&1)} offset:{2048*(s>>1)}")
    rd(0)
    rd(1)
    rd(2)
    a("s_waitcnt lgkmcnt(9)")
    for i in range(8):
        a(f"v_mul_f32 v{ACC+i}, v108, v{ACC+i}")
    for s in range(8):
        if s + 3 < 8:
            rd(s + 3)
        left = min(3, 7 - s)
        a(f"s_waitcnt lgkmcnt({3*left})")
        base = FR + 12 * (s & 3)
        for b in range(2):
            a(f"v_mfma_f32_16x16x32_bf16 {vr(ACC+4*b,4)}, {vr(base+4*b,4)}, {vr(base+8,4)}, {vr(ACC+4*b,4)}")
    a("s_lshl_b32 s40, s31, 10")
    a(f"s_add_u32 s40, s40, {EXCH}")
    a("v_lshl_add_u32 v8, v1, 4, s40")
    a("s_lshl_b32 s40, s32, 10")
    a(f"s_add_u32 s40, s40, {EXCH}")
    a("v_lshl_add_u32 v9, v1, 4, s40")
    a("v_lshlrev_b32 v4, 16, v7")
    a("v_lshl_add_u32 v4, v3, 3, v4")
    a("s_lshl_b32 s39, s28, 10")
    a("s_lshl_b32 s40, s38, 1")
    a("s_add_u32 s39, s39, s40")
    for b in range(2):
        a(f"v_cvt_pk_bf16_f32 v{64+2*b}, v{ACC+4*b}, v{ACC+4*b+1}")
        a(f"v_cvt_pk_bf16_f32 v{64+2*b+1}, v{ACC+4*b+2}, v{ACC+4*b+3}")
    a("ds_write_b128 v8, v[64:67]")
    a("s_waitcnt lgkmcnt(0)")
    a("s_barrier")
    ZR, ZI = 68, 72
    a(f"ds_read_b128 {vr(ZR,4)}, v9")
    a(f"ds_read_b128 {vr(ZI,4)}, v9 offset:4096")
    a("s_waitcnt lgkmcnt(1)")
    GR, GI = 76, 80
    a(f"v_mfma_f32_16x16x32_bf16 {vr(GR,4)}, {vr(ZR,4)}, {vr(TC,4)}, 0")
    a(f"v_mfma_f32_16x16x32_bf16 {vr(GI,4)}, {vr(ZR,4)}, {vr(TN,4)}, 0")
    a("s_waitcnt lgkmcnt(0)")
    a(f"v_mfma_f32_16x16x32_bf16 {vr(GR,4)}, {vr(ZI,4)}, {vr(TS,4)}, {vr(GR,4)}")
    a(f"v_mfma_f32_16x16x32_bf16 {vr(GI,4)}, {vr(ZI,4)}, {vr(TC,4)}, {vr(GI,4)}")
    a(f"v_cvt_pk_bf16_f32 v88, v{GR}, v{GR+1}")
    a(f"v_cvt_pk_bf16_f32 v89, v{GR+2}, v{GR+3}")
    a("buffer_store_dwordx2 v[88:89], v4, s[24:27], s39 offen")
    a(f"v_cvt_pk_bf16_f32 v90, v{GI}, v{GI+1}")
    a(f"v_cvt_pk_bf16_f32 v91, v{GI+2}, v{GI+3}")
    a("buffer_store_dwordx2 v[90:91], v4, s[24:27], s39 offen offset:512")
    a("K1_END:")
    a("s_endpgm")
    return dict(name="k1_kernel", vgpr=128, accum=128, sgpr=48, grid=256, block=512, lds=WST + 65536)


def k2(a):
    a("k2_kernel:")
    a("s_cmp_ge_u32 s2, 288")
    a("s_cbranch_scc1 K2_END")
    a("s_load_dwordx2 s[4:5], s[0:1], 0")
    a("s_load_dwordx2 s[10:11], s[0:1], 80")
    a("s_load_dwordx2 s[34:35], s[0:1], 48")
    a("s_cmp_lt_u32 s2, 32")
    a("s_cbranch_scc1 K2_CS")
    a("s_sub_u32 s3, s2, 32")
    a("s_and_b32 s28, s3, 31")
    a("s_lshr_b32 s30, s3, 5")
    a("v_lshrrev_b32 v1, 6, v0")
    a("v_readfirstlane_b32 s31, v1")
    a("v_and_b32 v1, 63, v0")
    a("v_and_b32 v2, 15, v0")
    a("v_lshrrev_b32 v3, 4, v1")
    a("v_lshrrev_b32 v4, 2, v1")
    a("v_lshlrev_b32 v4, 9, v4")
    a("v_and_b32 v5, 3, v1")
    a("v_lshl_add_u32 v4, v5, 4, v4")
    a("s_lshl_b32 s36, s28, 16")
    a("s_lshl_b32 s37, s30, 6")
    a("s_add_u32 s36, s36, s37")
    a("s_lshl_b32 s38, s31, 14")
    a("s_add_u32 s36, s36, s38")
    a("s_add_u32 s39, s36, 8192")
    a("s_lshl_b32 s38, s31, 11")
    a("s_lshl_b32 s40, s31, 4")
    a("v_add_u32 v6, s40, v2")
    a("v_lshl_add_u32 v7, v6, 5, s28")
    a("v_sub_u32 v8, 0x800, v7")
    a("v_and_b32 v8, 0x7ff, v8")
    a("v_lshlrev_b32 v7, 10, v7")
    a("v_lshl_add_u32 v7, v3, 4, v7")
    a("v_lshlrev_b32 v13, 10, v8")
    a("v_lshl_add_u32 v9, v3, 4, s37")
    a("v_sub_u32 v10, 1008, v9")
    a("v_add_u32 v10, v13, v10")
    a("v_sub_u32 v11, 1024, v9")
    a("v_cmp_eq_u32 vcc, 0, v9")
    a("v_mov_b32 v12, 512")
    a("v_cndmask_b32 v11, v11, v12, vcc")
    a("v_add_u32 v11, v13, v11")
    a("v_cndmask_b32 v61, 1.0, 0, vcc")
    a("s_waitcnt lgkmcnt(0)")
    srd(a, 12, 4, 5, 2097152)
    srd(a, 24, 10, 11, WS_SIZE)
    a("s_mov_b32 m0, s38")
    a("buffer_load_dwordx4 v4, s[24:27], s36 offen lds")
    a("s_add_u32 s38, s38, 1024")
    a("s_mov_b32 m0, s38")
    a("buffer_load_dwordx4 v4, s[24:27], s39 offen lds")
    XA, XM, X0 = 16, 20, 24
    a(f"buffer_load_dwordx4 {vr(XA,4)}, v7, s[12:15], s37 offen")
    a(f"buffer_load_dwordx4 {vr(XM,4)}, v10, s[12:15], 0 offen")
    a(f"buffer_load_ushort v{X0}, v11, s[12:15], 0 offen")
    a("s_lshl_b32 s40, s28, 2")
    a("s_add_u32 s40, s40, s31")
    a("s_lshl_b32 s40, s40, 4")
    a("s_add_u32 s40, s40, s30")
    a("s_lshl_b32 s42, s40, 10")
    a(f"s_add_u32 s42, s42, {WS_H}")
    a("s_lshl_b32 s43, s40, 7")
    a(f"s_add_u32 s43, s43, {WS_ST}")
    a("v_lshlrev_b32 v7, 4, v1")
    a("v_and_b32 v9, 31, v8")
    a("v_lshrrev_b32 v8, 5, v8")
    a("v_lshl_add_u32 v8, v9, 6, v8")
    a("v_lshrrev_b32 v9, 4, v8")
    a("v_and_b32 v8, 15, v8")
    a("v_lshlrev_b32 v10, 14, v9")
    a("v_lshl_add_u32 v10, v3, 8, v10")
    a("v_lshl_add_u32 v10, v8, 4, v10")
    a("v_lshlrev_b32 v11, 11, v9")
    a("v_lshl_add_u32 v11, v8, 3, v11")
    a("s_add_u32 s44, s30, 8")
    a("s_lshl_b32 s45, s44, 7")
    a(f"s_add_u32 s45, s45, {WS_ST}")
    a("s_lshl_b32 s44, s44, 10")
    a(f"s_add_u32 s44, s44, {WS_H}")
    E = 32
    a("v_lshlrev_b32 v12, 2, v3")
    a("v_mul_u32_u24 v12, v6, v12")
    a("s_mov_b32 s40, 0x3c800000")
    a("v_mul_u32_u24 v13, 13, v6")
    for st in range(4):
        for jj in range(4):
            a("v_and_b32 v14, 63, v12")
            a("v_cvt_f32_u32 v14, v14")
            a("v_mul_f32 v14, s40, v14")
            a("v_cos_f32 v15, v14")
            a("v_sin_f32 v14, v14")
            if jj < 3:
                a("v_add_u32 v12, v12, v6")
            else:
                a("v_add_u32 v12, v12, v13")
            a(f"v_cvt_pk_bf16_f32 v{E+4*st+jj}, v15, v14")
    a("v_lshrrev_b32 v12, 2, v2")
    a("v_lshl_add_u32 v12, v3, 3, v12")
    a("v_lshlrev_b32 v12, 6, v12")
    a("v_lshl_add_u32 v12, v5, 4, v12")
    ACC = 48
    a("s_mov_b32 s41, 0xffff0000")
    a("s_waitcnt vmcnt(3)")
    a("s_barrier")
    AF = 64
    for st in range(4):
        for b in range(2):
            for i in range(2):
                a(f"ds_read_b64_tr_b16 {vr(AF+st*8+b*4+2*i,2)}, v12 offset:{2048*st+256*i+8*b}")
    for st in range(4):
        a(f"s_waitcnt lgkmcnt({12-4*st})")
        for b in range(2):
            c = "0" if st == 0 else vr(ACC + 4 * b, 4)
            a(f"v_mfma_f32_16x16x32_bf16 {vr(ACC+4*b,4)}, {vr(AF+st*8+b*4,4)}, {vr(E+4*st,4)}, {c}")
    a("s_waitcnt vmcnt(0)")
    D, M = 64, 72
    for q in range(4):
        a(f"v_lshlrev_b32 v{D+2*q}, 16, v{XA+q}")
        a(f"v_and_b32 v{D+2*q+1}, s41, v{XA+q}")
    a(f"v_lshlrev_b32 v{M}, 16, v{X0}")
    for j in range(1, 8):
        el = 8 - j
        if el & 1:
            a(f"v_and_b32 v{M+j}, s41, v{XM+el//2}")
        else:
            a(f"v_lshlrev_b32 v{M+j}, 16, v{XM+el//2}")
    for q in range(4):
        a(f"v_pk_add_f32 {vr(M+2*q,2)}, {vr(M+2*q,2)}, {vr(ACC+2*q,2)}")
    a(f"v_mul_f32 v{ACC}, v61, v{ACC}")
    for q in range(4):
        a(f"v_pk_add_f32 {vr(D+2*q,2)}, {vr(D+2*q,2)}, {vr(ACC+2*q,2)}")
    for q in range(4):
        a(f"v_cvt_pk_bf16_f32 v{88+q}, v{D+2*q}, v{D+2*q+1}")
    a("buffer_store_dwordx4 v[88:91], v7, s[24:27], s42 offen")
    for q in range(4):
        a(f"v_cvt_pk_bf16_f32 v{92+q}, v{M+2*q}, v{M+2*q+1}")
    a("buffer_store_dwordx4 v[92:95], v10, s[24:27], s44 offen")
    a("v_mov_b32 v4, 0x3f803f80")
    for h, P in enumerate((88, 92)):
        a(f"v_dot2_f32_bf16 v{80+2*h}, v{P}, v4, 0")
        a(f"v_dot2_f32_bf16 v{81+2*h}, v{P}, v{P}, 0")
    for q in range(1, 4):
        for h, P in enumerate((88, 92)):
            a(f"v_dot2_f32_bf16 v{80+2*h}, v{P+q}, v4, v{80+2*h}")
            a(f"v_dot2_f32_bf16 v{81+2*h}, v{P+q}, v{P+q}, v{81+2*h}")
    for sw in ("v_permlane32_swap_b32", "v_permlane16_swap_b32"):
        for r in range(4):
            a(f"v_mov_b32 v{84+r}, v{80+r}")
        for r in range(4):
            a(f"{sw} v{80+r}, v{84+r}")
        for r in range(4):
            a(f"v_add_f32 v{80+r}, v{80+r}, v{84+r}")
    a("v_lshlrev_b32 v7, 3, v1")
    a("v_cmp_gt_u32 vcc, 16, v1")
    a("s_and_saveexec_b64 s[46:47], vcc")
    a("buffer_store_dwordx2 v[80:81], v7, s[24:27], s43 offen")
    a("buffer_store_dwordx2 v[82:83], v11, s[24:27], s45 offen")
    a("s_endpgm")
    a("K2_CS:")
    a("s_cmp_ge_u32 s2, 28")
    a("s_cbranch_scc1 K2_END")
    a("v_and_b32 v1, 7, v0")
    a("v_lshrrev_b32 v2, 3, v0")
    a("s_mov_b32 s40, 57344")
    a("v_mul_lo_u32 v3, v2, s40")
    a("v_lshl_add_u32 v3, v1, 4, v3")
    a("s_lshl_b32 s36, s2, 7")
    a("s_waitcnt lgkmcnt(0)")
    srd(a, 12, 34, 35, 1835008)
    srd(a, 24, 10, 11, WS_SIZE)
    for i in range(16):
        a(f"buffer_load_dwordx4 {vr(16+4*i,4)}, v3, s[12:15], s36 offen")
        if i < 15:
            a("s_add_u32 s36, s36, 3584")
    a("s_mov_b32 s41, 0xffff0000")
    for c in range(8):
        a(f"v_mov_b32 v{80+c}, 0")
    for i in range(16):
        a(f"s_waitcnt vmcnt({15-i})")
        for d in range(4):
            t = 4 + 2 * (d & 1)
            a(f"v_lshlrev_b32 v{t}, 16, v{16+4*i+d}")
            a(f"v_and_b32 v{t+1}, s41, v{16+4*i+d}")
            a(f"v_pk_add_f32 {vr(80+2*d,2)}, {vr(80+2*d,2)}, {vr(t,2)}")
    a("v_lshlrev_b32 v6, 8, v2")
    a("v_lshl_add_u32 v6, v1, 5, v6")
    a("ds_write_b128 v6, v[80:83]")
    a("ds_write_b128 v6, v[84:87] offset:16")
    a("s_waitcnt lgkmcnt(0)")
    a("s_barrier")
    a("v_and_b32 v1, 63, v0")
    a("v_lshrrev_b32 v2, 6, v0")
    a("v_lshlrev_b32 v6, 11, v2")
    a("v_lshl_add_u32 v6, v1, 2, v6")
    for i in range(8):
        a(f"ds_read_b32 v{16+i}, v6 offset:{256*i}")
    a("s_waitcnt lgkmcnt(0)")
    for i in range(1, 8):
        a(f"v_add_f32 v16, v16, v{16+i}")
    a("s_barrier")
    a("v_lshlrev_b32 v6, 2, v0")
    a("ds_write_b32 v6, v16")
    a("s_waitcnt lgkmcnt(0)")
    a("s_barrier")
    a("v_cmp_gt_u32 vcc, 64, v0")
    a("s_and_saveexec_b64 s[42:43], vcc")
    a("s_cbranch_execz K2_END")
    for i in range(4):
        a(f"ds_read_b32 v{16+i}, v6 offset:{256*i}")
    a("s_waitcnt lgkmcnt(0)")
    for i in range(1, 4):
        a(f"v_add_f32 v16, v16, v{16+i}")
    a("s_lshl_b32 s36, s2, 8")
    a(f"s_add_u32 s36, s36, {WS_CS}")
    a("buffer_store_dword v16, v6, s[24:27], s36 offen")
    a("K2_END:")
    a("s_endpgm")
    return dict(name="k2_kernel", vgpr=96, accum=96, sgpr=48, grid=288, block=256, lds=8192)


def k3(a):
    vm = VM(a)
    a("k3_kernel:")
    a("s_cmp_ge_u32 s2, 256")
    a("s_cbranch_scc1 K3_END")
    a("s_load_dwordx2 s[4:5], s[0:1], 48")
    a("s_load_dwordx2 s[10:11], s[0:1], 80")
    a("s_and_b32 s28, s2, 7")
    a("s_lshr_b32 s29, s2, 3")
    a("s_lshr_b32 s30, s28, 1")
    a("s_lshl_b32 s30, s30, 2")
    a("s_and_b32 s3, s29, 3")
    a("s_add_u32 s30, s30, s3")
    a("s_and_b32 s28, s28, 1")
    a("s_lshl_b32 s28, s28, 3")
    a("s_lshr_b32 s29, s29, 2")
    a("s_add_u32 s28, s28, s29")
    a("s_mul_i32 s29, s28, 224")
    a("v_lshrrev_b32 v1, 6, v0")
    a("v_readfirstlane_b32 s31, v1")
    a("v_and_b32 v1, 63, v0")
    a("v_and_b32 v2, 15, v0")
    a("v_lshrrev_b32 v3, 4, v1")
    a("s_lshl_b32 s32, s30, 3")
    a("s_lshl_b32 s33, s31, 1")
    a("s_add_u32 s32, s32, s33")
    a("s_lshl_b32 s33, s32, 14")
    a(f"s_add_u32 s33, s33, {WS_H}")
    a("s_add_u32 s34, s33, 16384")
    a("v_lshlrev_b32 v4, 4, v1")
    OA, OD, OS = 16, 24, 31
    a("s_mov_b32 s44, 4682")
    a("s_mov_b32 s35, 3584")

    def offs(i):
        a(f"v_add_u32 v5, {64*i}, v1")
        a("v_mul_u32_u24 v6, s44, v5")
        a("v_lshrrev_b32 v6, 16, v6")
        a("v_mul_u32_u24 v7, 14, v6")
        a("v_sub_u32 v5, v5, v7")
        a("v_and_b32 v7, 0x13, v6")
        a("v_and_b32 v8, 4, v6")
        a("v_lshl_add_u32 v7, v8, 1, v7")
        a("v_and_b32 v8, 8, v6")
        a("v_lshrrev_b32 v8, 1, v8")
        a("v_add_u32 v7, v7, v8")
        a("v_mul_u32_u24 v8, s35, v7")
        a(f"v_lshl_add_u32 v{OA+i}, v5, 4, v8")
        a(f"v_sub_u32 v8, 0x1b200, v8")
        a(f"v_lshl_add_u32 v{OD+i}, v5, 4, v8")
        if i == 0:
            a("s_lshl_b32 s36, s31, 5")
            a("s_sub_u32 s36, 512, s36")
            a("v_sub_u32 v8, s36, v7")
            a("v_mov_b32 v9, 0x200")
            a("v_cmp_eq_u32 vcc, v8, v9")
            a("v_mov_b32 v9, 0x100")
            a("v_cndmask_b32 v8, v8, v9, vcc")
            a("v_mul_u32_u24 v8, s35, v8")
            a(f"v_lshl_add_u32 v{OS}, v5, 4, v8")
    offs(0)
    offs(1)
    a("s_waitcnt lgkmcnt(0)")
    srd(a, 12, 4, 5, 1835008)
    srd(a, 24, 10, 11, WS_SIZE)
    AF = 176
    NA = 6
    BF = 64
    ACC = 120

    def aload(s):
        base = AF + 8 * (s % NA)
        vm(f"buffer_load_dwordx4 {vr(base,4)}, v4, s[24:27], s33 offen offset:{1024*(s&3)}", f"A{s}")
        vm(f"buffer_load_dwordx4 {vr(base+4,4)}, v4, s[24:27], s34 offen offset:{1024*(s&3)}", f"A{s}")
        if (s & 3) == 3:
            a("s_add_u32 s33, s33, 4096")
            a("s_add_u32 s34, s34, 4096")

    def dma_setup(c):
        a(f"s_add_u32 s36, s31, {4*c}")
        a("s_mul_i32 s37, s36, 7168")
        if c < 2:
            a("s_mul_i32 s38, s36, 114688")
            a("s_add_u32 s38, s38, s29")
        else:
            a("s_lshl_b32 s38, s36, 5")
            a("s_sub_u32 s38, 737, s38")
            a("s_mul_i32 s38, s38, 3584")
            a("s_add_u32 s38, s38, s29")

    def dma(c, i):
        a("s_mov_b32 m0, s37")
        if c == 2 and i == 0:
            vm(f"buffer_load_dwordx4 v{OS}, s[12:15], s29 offen lds", f"D{c}")
        else:
            vm(f"buffer_load_dwordx4 v{(OA if c < 2 else OD)+i}, s[12:15], s38 offen lds", f"D{c}")
        if i < 6:
            a("s_add_u32 s37, s37, 1024")
    aload(0)
    dma_setup(0)
    for i in range(7):
        dma(0, i)
        if i + 2 < 7:
            offs(i + 2)
    aload(1)
    dma_setup(1)
    for i in range(7):
        dma(1, i)
    aload(2)
    aload(3)
    a("v_lshrrev_b32 v5, 1, v3")
    a("v_and_b32 v6, 1, v3")
    a("v_lshlrev_b32 v5, 4, v5")
    a("v_lshl_add_u32 v5, v6, 2, v5")
    a("v_lshrrev_b32 v6, 2, v2")
    a("v_add_u32 v5, v5, v6")
    a("v_mul_u32_u24 v5, 224, v5")
    a("v_and_b32 v6, 3, v1")
    a("v_lshl_add_u32 v5, v6, 3, v5")
    a("v_add_u32 v6, 57344, v5")

    def brd(s):
        base = BF + 28 * (s & 1)
        vb = 5 if s < 8 else 6
        off = 7168 * (s & 7)
        for nb in range(7):
            for i in range(2):
                a(f"ds_read_b64_tr_b16 {vr(base+4*nb+2*i,2)}, v{vb} offset:{off+1792*i+32*nb}")
    CS = 32
    STA = 224
    vm.wait("D0")
    a("s_barrier")
    brd(0)
    for s in range(16):
        c2 = s // 4 + 2
        if s + 4 < 16:
            aload(s + 4)
        if c2 < 4:
            if (s & 3) == 0:
                dma_setup(c2)
            for i in range(2 * (s & 3), min(7, 2 * (s & 3) + 2)):
                dma(c2, i)
        if s == 10:
            a("v_lshlrev_b32 v60, 4, v3")
            a("s_lshl_b32 s36, s29, 1")
            a(f"s_add_u32 s36, s36, {WS_CS}")
            for nb in range(7):
                vm(f"buffer_load_dwordx4 {vr(CS+4*nb,4)}, v60, s[24:27], s36 offen offset:{64*nb}", "CS")
            a("v_lshlrev_b32 v60, 9, v3")
            a("v_lshl_add_u32 v60, v2, 3, v60")
            a("s_lshl_b32 s36, s32, 11")
            a(f"s_add_u32 s36, s36, {WS_ST}")
            for aa in range(2):
                for q in range(4):
                    vm(f"buffer_load_dwordx2 {vr(STA+8*aa+2*q,2)}, v60, s[24:27], s36 offen offset:{2048*aa+128*q}", "ST")
        if s < 15:
            if (s & 3) == 3:
                vm.wait(f"D{(s+1)//4}")
                a("s_barrier")
            brd(s + 1)
            vm.wait(f"A{s}", extra=" lgkmcnt(14)")
        else:
            vm.wait(f"A{s}", extra=" lgkmcnt(0)")
        base = BF + 28 * (s & 1)
        ab = AF + 8 * (s % NA)
        for nb in range(7):
            for aa in range(2):
                c = "0" if s == 0 else vr(ACC + 28 * aa + 4 * nb, 4)
                a(f"v_mfma_f32_16x16x32_bf16 {vr(ACC+28*aa+4*nb,4)}, {vr(base+4*nb,4)}, {vr(ab+4*aa,4)}, {c}")
    a("s_waitcnt vmcnt(0)")
    for aa in range(2):
        b = STA + 8 * aa
        a(f"v_pk_add_f32 {vr(b,2)}, {vr(b,2)}, {vr(b+2,2)}")
        a(f"v_pk_add_f32 {vr(b+4,2)}, {vr(b+4,2)}, {vr(b+6,2)}")
        a(f"v_pk_add_f32 {vr(8+2*aa,2)}, {vr(b,2)}, {vr(b+4,2)}")
    for sw in ("v_permlane32_swap_b32", "v_permlane16_swap_b32"):
        for r in range(4):
            a(f"v_mov_b32 v{12+r}, v{8+r}")
        for r in range(4):
            a(f"{sw} v{8+r}, v{12+r}")
        for r in range(4):
            a(f"v_add_f32 v{8+r}, v{8+r}, v{12+r}")
    a("s_mov_b32 s40, 0x3b000000")
    for aa in range(2):
        m, q = 8 + 2 * aa, 9 + 2 * aa
        a(f"v_mul_f32 v{m}, s40, v{m}")
        a(f"v_mul_f32 v{q}, s40, v{q}")
        a(f"v_fma_f32 v{q}, -v{m}, v{m}, v{q}")
        a(f"v_max_f32 v{q}, 0, v{q}")
        a(f"v_add_f32 v{q}, 0x3727c5ac, v{q}")
        a(f"v_rsq_f32 v{q}, v{q}")
        a(f"v_mov_b32 v{12+2*aa}, v{q}")
        a(f"v_mul_f32 v{16+2*aa}, -v{m}, v{q}")
    a("v_and_b32 v5, 1, v3")
    a("v_lshrrev_b32 v6, 1, v3")
    a("v_lshl_add_u32 v7, v5, 1, v6")
    a("v_lshlrev_b32 v7, 8, v7")
    a("v_lshl_add_u32 v20, v2, 4, v7")
    a("s_mov_b32 s36, 57344")
    a("v_mul_u32_u24 v5, s36, v5")
    a("v_lshl_add_u32 v5, v6, 8, v5")
    a("v_lshl_add_u32 v21, v2, 4, v5")
    a("s_mul_i32 s37, s32, 57344")
    a("s_mul_i32 s38, s28, 3584")
    a("s_add_u32 s37, s37, s38")
    a(f"s_add_u32 s37, s37, {WS_H1}")
    a("s_add_u32 s38, s37, 57344")
    OUT = 64
    for aa in range(2):
        R, NM = 12 + 2 * aa, 16 + 2 * aa
        for nb in range(7):
            ac = ACC + 28 * aa + 4 * nb
            for h in range(2):
                a(f"v_pk_mul_f32 {vr(ac+2*h,2)}, {vr(ac+2*h,2)}, {vr(R,2)} op_sel_hi:[1,0]")
                a(f"v_pk_fma_f32 {vr(ac+2*h,2)}, {vr(CS+4*nb+2*h,2)}, {vr(NM,2)}, {vr(ac+2*h,2)} op_sel_hi:[1,0,1]")
            o = OUT + 16 * aa + 2 * nb if nb < 6 else 96 + 2 * aa
            a(f"v_cvt_pk_bf16_f32 v{o}, v{ac}, v{ac+1}")
            a(f"v_cvt_pk_bf16_f32 v{o+1}, v{ac+2}, v{ac+3}")
            a(f"v_pk_max_i16 v{o}, v{o}, 0")
            a(f"v_pk_max_i16 v{o+1}, v{o+1}, 0")
            if nb < 6 and (nb & 1):
                p = o - 2
                a(f"v_permlane16_swap_b32 v{p}, v{p+2}")
                a(f"v_permlane16_swap_b32 v{p+1}, v{p+3}")
                a(f"buffer_store_dwordx4 {vr(p,4)}, v20, s[24:27], s{37+aa} offen offset:{512*(nb-1)}")
    a("v_permlane16_swap_b32 v96, v98")
    a("v_permlane16_swap_b32 v97, v99")
    a("buffer_store_dwordx4 v[96:99], v21, s[24:27], s37 offen offset:3072")
    a("K3_END:")
    a("s_endpgm")
    return dict(name="k3_kernel", vgpr=240, accum=240, sgpr=48, grid=256, block=256, lds=114688)


def k4(a):
    DEPTH = 7
    vm = VM(a)
    a("k4_kernel:")
    a("s_cmp_ge_u32 s2, 256")
    a("s_cbranch_scc1 K4_END")
    a("s_load_dwordx2 s[4:5], s[0:1], 56")
    a("s_load_dwordx2 s[6:7], s[0:1], 64")
    a("s_load_dwordx2 s[10:11], s[0:1], 80")
    a("s_and_b32 s28, s2, 7")
    a("s_lshr_b32 s29, s2, 3")
    a("s_lshl_b32 s30, s28, 2")
    a("s_and_b32 s3, s29, 3")
    a("s_add_u32 s30, s30, s3")
    a("s_lshr_b32 s28, s29, 2")
    a("v_lshrrev_b32 v1, 6, v0")
    a("v_readfirstlane_b32 s31, v1")
    a("v_and_b32 v1, 63, v0")
    a("v_and_b32 v2, 15, v0")
    a("v_lshrrev_b32 v3, 4, v1")
    a("v_lshlrev_b32 v4, 4, v1")
    a("s_mul_i32 s44, s30, 229376")
    a("s_mul_i32 s33, s31, 14336")
    a("s_add_u32 s44, s44, s33")
    a(f"s_add_u32 s44, s44, {WS_H1}")
    a("s_add_u32 s45, s44, 57344")
    a("s_add_u32 s46, s44, 114688")
    a("s_add_u32 s47, s44, 172032")
    a("v_lshrrev_b32 v5, 3, v1")
    a("v_and_b32 v6, 3, v5")
    a("v_and_b32 v7, 4, v5")
    a("v_lshl_add_u32 v6, v7, 1, v6")
    a("v_lshlrev_b32 v6, 10, v6")
    a("v_lshrrev_b32 v7, 1, v5")
    a("v_bfe_u32 v8, v1, 1, 2")
    a("v_xor_b32 v7, v7, v8")
    a("v_lshl_add_u32 v6, v7, 5, v6")
    a("v_and_b32 v7, 1, v1")
    a("v_lshl_add_u32 v5, v7, 4, v6")
    a("s_mul_i32 s36, s31, 458752")
    a("s_lshl_b32 s37, s28, 7")
    a("s_add_u32 s36, s36, s37")
    a("s_mul_i32 s38, s31, 28672")
    a("s_waitcnt lgkmcnt(0)")
    srd(a, 12, 4, 5, 1835008)
    srd(a, 20, 10, 11, WS_SIZE)
    srd(a, 24, 6, 7, 2097152)
    AF = 144
    BF = 32
    ACC = 64

    def issue(s):
        slot = s % DEPTH
        for i, ro in enumerate((0, 4096, 16384, 20480)):
            a(f"s_add_u32 s39, s38, {4096*slot+1024*i}")
            a("s_mov_b32 m0, s39")
            a(f"s_add_u32 s40, s36, {32768*s+ro}")
            vm("buffer_load_dwordx4 v5, s[12:15], s40 offen lds", f"S{s}")
        for aa in range(4):
            vm(f"buffer_load_dwordx4 {vr(AF+16*slot+4*aa,4)}, v4, s[20:23], s{44+aa} offen offset:{1024*(s&3)}", f"S{s}")
        if (s & 3) == 3:
            for aa in range(4):
                a(f"s_add_u32 s{44+aa}, s{44+aa}, 4096")
    PRE = 4
    for s in range(PRE):
        issue(s)
    a("v_lshrrev_b32 v6, 1, v3")
    a("v_and_b32 v7, 1, v3")
    a("v_lshlrev_b32 v6, 4, v6")
    a("v_lshl_add_u32 v6, v7, 2, v6")
    a("v_lshrrev_b32 v8, 2, v2")
    a("v_add_u32 v6, v6, v8")
    a("v_lshlrev_b32 v6, 7, v6")
    a("v_and_b32 v9, 3, v1")
    a("v_lshl_add_u32 v6, v9, 3, v6")
    a("v_add_u32 v6, s38, v6")
    a("v_lshrrev_b32 v8, 1, v8")
    a("v_lshl_add_u32 v7, v7, 1, v8")
    for nb in range(4):
        a(f"v_xor_b32 v8, {nb}, v7")
        a(f"v_lshl_add_u32 v{10+nb}, v8, 5, v6")

    def brd(s):
        base = BF + 16 * (s & 1)
        slot = s % DEPTH
        for nb in range(4):
            for i in range(2):
                a(f"ds_read_b64_tr_b16 {vr(base+4*nb+2*i,2)}, v{10+nb} offset:{4096*slot+1024*i}")
    vm.wait("S0")
    brd(0)
    nxt = PRE
    for s in range(14):
        while nxt < 14 and nxt <= s + DEPTH - 1 and nxt <= s + PRE + 1:
            issue(nxt)
            nxt += 1
        if s < 13:
            vm.wait(f"S{s+1}")
            brd(s + 1)
            a("s_waitcnt lgkmcnt(8)")
        else:
            a("s_waitcnt lgkmcnt(0)")
        base = BF + 16 * (s & 1)
        slot = s % DEPTH
        for tb in range(4):
            for mb in range(4):
                c = "0" if s == 0 else vr(ACC + 16 * tb + 4 * mb, 4)
                a(f"v_mfma_f32_16x16x32_bf16 {vr(ACC+16*tb+4*mb,4)}, {vr(base+4*mb,4)}, {vr(AF+16*slot+4*tb,4)}, {c}")
    a("v_lshrrev_b32 v6, 2, v0")
    a("v_and_b32 v7, 3, v0")
    a("v_lshl_add_u32 v8, v6, 5, s30")
    a("v_lshlrev_b32 v8, 10, v8")
    a("v_lshl_add_u32 v9, v7, 5, s37")
    a("v_add_u32 v14, v8, v9")
    a("v_lshrrev_b32 v8, 4, v6")
    a("v_lshlrev_b32 v8, 14, v8")
    a("v_and_b32 v15, 15, v6")
    a("v_lshl_add_u32 v8, v15, 4, v8")
    a("s_lshl_b32 s39, s30, 16")
    a(f"s_add_u32 s39, s39, {WS_H}")
    a("v_lshlrev_b32 v9, 4, v9")
    HR = 16
    a("s_cmp_ge_u32 s28, 4")
    a("s_cbranch_scc1 K4_MIR")
    a("v_add_u32 v15, v8, v9")
    a(f"buffer_load_dwordx4 {vr(HR,4)}, v15, s[20:23], s39 offen")
    a(f"buffer_load_dwordx4 {vr(HR+4,4)}, v15, s[20:23], s39 offen offset:256")
    a("s_branch K4_RED")
    a("K4_MIR:")
    a("v_sub_u32 v15, 0x5e00, v9")
    a("v_add_u32 v15, v8, v15")
    a(f"buffer_load_dwordx4 {vr(HR,4)}, v15, s[20:23], s39 offen offset:256")
    a(f"buffer_load_dwordx4 {vr(HR+4,4)}, v15, s[20:23], s39 offen")
    a("v_sub_u32 v26, 0x6000, v9")
    a("v_mov_b32 v27, 0x4000")
    a("v_cmp_eq_u32 vcc, v26, v27")
    a("v_mov_b32 v27, 0x2000")
    a("v_cndmask_b32 v26, v26, v27, vcc")
    a("v_add_u32 v26, v8, v26")
    a(f"buffer_load_ushort v{HR+8}, v26, s[20:23], s39 offen")
    a(f"buffer_load_ushort v{HR+9}, v15, s[20:23], s39 offen offset:256")
    a("K4_RED:")
    a("v_mul_u32_u24 v26, 272, v2")
    a("v_lshl_add_u32 v26, v3, 4, v26")
    a("v_add_u32 v26, s38, v26")
    a("s_nop 7")
    for tb in range(4):
        for mb in range(4):
            a(f"ds_write_b128 v26, {vr(ACC+16*tb+4*mb,4)} offset:{4352*tb+64*mb}")
    a("v_mul_u32_u24 v27, 272, v6")
    a("v_lshl_add_u32 v27, v7, 6, v27")
    a("v_add_u32 v28, 57344, v27")
    a("s_waitcnt lgkmcnt(0)")
    a("s_barrier")
    R = 64
    for w in range(4):
        vb = 27 if w < 2 else 28
        for q in range(4):
            a(f"ds_read_b128 {vr(R+16*w+4*q,4)}, v{vb} offset:{28672*(w&1)+16*q}")
    a("s_mov_b32 s41, 0xffff0000")
    a("s_waitcnt lgkmcnt(8)")
    for i in range(0, 16, 2):
        a(f"v_pk_add_f32 {vr(R+i,2)}, {vr(R+i,2)}, {vr(R+16+i,2)}")
    a("s_waitcnt lgkmcnt(0)")
    for i in range(0, 16, 2):
        a(f"v_pk_add_f32 {vr(R+32+i,2)}, {vr(R+32+i,2)}, {vr(R+48+i,2)}")
    for i in range(0, 16, 2):
        a(f"v_pk_add_f32 {vr(R+i,2)}, {vr(R+i,2)}, {vr(R+32+i,2)}")
    a("s_waitcnt vmcnt(0)")
    a("s_cmp_ge_u32 s28, 4")
    a("s_cbranch_scc1 K4_MIR2")
    for i in range(8):
        a(f"v_lshlrev_b32 v30, 16, v{HR+i}")
        a(f"v_and_b32 v31, s41, v{HR+i}")
        a(f"v_pk_add_f32 v[30:31], v[30:31], {vr(R+2*i,2)}")
        a(f"v_cvt_pk_bf16_f32 v{R+32+i}, v30, v31")
    a("s_branch K4_ST")
    a("K4_MIR2:")
    for q in range(2):
        for jp in range(4):
            for h in range(2):
                j = 2 * jp + h
                if j == 0:
                    a(f"v_lshlrev_b32 v30, 16, v{HR+8+q}")
                else:
                    el = 8 - j
                    d = HR + 4 * q + el // 2
                    if el & 1:
                        a(f"v_and_b32 v{30+h}, s41, v{d}")
                    else:
                        a(f"v_lshlrev_b32 v{30+h}, 16, v{d}")
            a(f"v_pk_add_f32 v[30:31], v[30:31], {vr(R+8*q+2*jp,2)}")
            a(f"v_cvt_pk_bf16_f32 v{R+32+4*q+jp}, v30, v31")
    a("K4_ST:")
    a(f"buffer_store_dwordx4 {vr(R+32,4)}, v14, s[24:27], 0 offen")
    a(f"buffer_store_dwordx4 {vr(R+36,4)}, v14, s[24:27], 0 offen offset:16")
    a("K4_END:")
    a("s_endpgm")
    return dict(name="k4_kernel", vgpr=256, accum=256, sgpr=48, grid=256, block=256, lds=114688)


def main(path):
    infos, bodies = [], []
    for k in (k1, k2, k3, k4):
        a = Asm()
        info = k(a)
        infos.append(info)
        bodies.append(a.finalize())
    out = HEADER
    for i in infos:
        out += f"; @launch kernel={i['name']} grid=({i['grid']},1,1) block=({i['block']},1,1) lds={i['lds']}\n"
    out += '.amdgcn_target "amdgcn-amd-amdhsa--gfx950"\n.text\n'
    for i, b in zip(infos, bodies):
        out += f".globl {i['name']}\n.p2align 8\n.type {i['name']},@function\n" + b
    out += '.section .rodata,"a"\n'
    for i in infos:
        out += f""".p2align 6
.amdhsa_kernel {i['name']}
  .amdhsa_next_free_vgpr {i['vgpr']}
  .amdhsa_next_free_sgpr {i['sgpr']}
  .amdhsa_accum_offset {i['accum']}
  .amdhsa_group_segment_fixed_size 0
  .amdhsa_kernarg_size 88
  .amdhsa_user_sgpr_count 2
  .amdhsa_user_sgpr_kernarg_segment_ptr 1
  .amdhsa_system_sgpr_workgroup_id_x 1
  .amdhsa_float_denorm_mode_32 3
.end_amdhsa_kernel
"""
    open(path, "w").write(out)


if __name__ == "__main__":
    main(sys.argv[1] if len(sys.argv) > 1 else "v2.s")
```
